```python
import torch

def _softmax(x, axis=-1):
    return torch.softmax(x, dim=axis)
def _gelu(x):
    return torch.nn.functional.gelu(x, approximate="tanh")
def _silu(x):
    return torch.nn.functional.silu(x)
def _sigmoid(x):
    return torch.sigmoid(x)
def _layernorm(x, axis=-1, eps=1e-5):
    m = x.mean(dim=axis, keepdim=True)
    v = x.var(dim=axis, keepdim=True, unbiased=False)
    return (x - m) / torch.sqrt(v + eps)
def _scatter_add(tgt, idx, src, axis=0):
    return tgt.clone().index_add_(axis, idx, src)
def _segment_sum(src, seg, n):
    out = torch.zeros((n,) + src.shape[1:], dtype=src.dtype)
    return out.index_add_(0, seg, src)
def _pad(x, pw):
    flat = tuple(v for pair in reversed(pw) for v in pair)
    return torch.nn.functional.pad(x, flat)

kernel_name = 'recurrent_scan__gqa_block_cached__glu_gated_bilinear__prompt'

def setup_inputs():

    _w = (lambda a: (lambda t: t.to(torch.bfloat16) if t.is_floating_point() else t)(torch.as_tensor(a)))
    def _A_setup():
        B, Sq, D = 1, 2048, 512
        Hq, Hkv, Sk, Dh = 32, 8, 2048, 128
        assert Hq % Hkv == 0, (Hq, Hkv)
        return {
            "x": _w((lambda *s: torch.randn(*s, dtype=torch.bfloat16) * 0.05)(B, Sq, D)),
            "k_cache": _w((lambda *s: torch.randn(*s, dtype=torch.bfloat16) * 1.6)(B, Hkv, Sk, Dh)),
            "v_cache": _w((lambda *s: torch.randn(*s, dtype=torch.bfloat16) * 1.6)(B, Hkv, Sk, Dh)),
            "wq": _w((lambda *s: torch.randn(*s, dtype=torch.bfloat16) * 1.6)(D, Hq * Dh) * (D ** -0.5)),
            "wo": _w((lambda *s: torch.randn(*s, dtype=torch.bfloat16) * 1.6)(Hq * Dh, D) * ((Hq * Dh) ** -0.5)),
        }
    _A_in = _A_setup()

    def _B_setup():
        B, S, D, F = 1, 2048, 512, 1792
        return {
            "x": _w((lambda *s: torch.randn(*s, dtype=torch.bfloat16) * 0.05)(B, S, D)),
            "w_gate": _w((lambda *s: torch.randn(*s, dtype=torch.bfloat16) * 0.2)(D, F) * (D ** -0.5)),
            "w_up": _w((lambda *s: torch.randn(*s, dtype=torch.bfloat16) * 0.2)(D, F) * (D ** -0.5)),
            "w_down": _w((lambda *s: torch.randn(*s, dtype=torch.bfloat16) * 0.2)(F, D) * (F ** -0.5)),
        }
    _B_in = _B_setup()

    return {
        "A_x": _A_in["x"],
        "A_k_cache": _A_in["k_cache"],
        "A_v_cache": _A_in["v_cache"],
        "A_wq": _A_in["wq"],
        "A_wo": _A_in["wo"],
        "B_x": _B_in["x"],
        "B_w_gate": _B_in["w_gate"],
        "B_w_up": _B_in["w_up"],
        "B_w_down": _B_in["w_down"],
    }

def reference(A_x, A_k_cache, A_v_cache, A_wq, A_wo, B_x, B_w_gate, B_w_up, B_w_down):
    def _A_ref(x, k_cache, v_cache, wq, wo):
        B, Sq, D = x.shape
        Hq, Dh = 32, 128
        Hkv = k_cache.shape[1]
        rep = Hq // Hkv
        q = (lambda x, *d: x.permute(*d))((x @ wq).reshape(B, Sq, Hq, Dh), 0, 2, 1, 3)
        k = (lambda x, n, axis: torch.repeat_interleave(x, n, dim=axis))(k_cache, rep, axis=1)
        v = (lambda x, n, axis: torch.repeat_interleave(x, n, dim=axis))(v_cache, rep, axis=1)
        scores = torch.einsum("bhqd,bhkd->bhqk", q, k) * (Dh ** -0.5)
        p = _softmax(scores, axis=-1)
        o = torch.einsum("bhqk,bhkd->bhqd", p, v)
        return (lambda x, *d: x.permute(*d))(o, 0, 2, 1, 3).reshape(B, Sq, Hq * Dh) @ wo

    def _B_ref(x, w_gate, w_up, w_down):
        g = torch.einsum("bsd,df->bsf", x, w_gate)
        u = torch.einsum("bsd,df->bsf", x, w_up)
        h = g * u
        return torch.einsum("bsf,fd->bsd", h, w_down)

    x = A_x
    xn = _layernorm(x, axis=-1)
    s = _A_ref(xn, A_k_cache, A_v_cache, A_wq, A_wo)
    g = _silu(_B_ref(xn, B_w_gate, B_w_up, B_w_down))
    return x + s * g
```

```python
import re, subprocess, sys, os

sys.path.insert(0, "cdna_kernels")


def vr(base, n=1, f="v"):
    return f"{f}{base}" if n == 1 else f"{f}[{base}:{base+n-1}]"


def ar(base, n=1):
    return vr(base, n, "a")


def sr(base, n=1):
    return vr(base, n, "s")


class Reg:
    def __init__(self, f, b, n=1):
        self.f, self.b, self.n = f, b, n

    def __str__(self):
        return vr(self.b, self.n, self.f)

    def __getitem__(self, i):
        if isinstance(i, slice):
            st = i.start or 0
            en = self.n if i.stop is None else i.stop
            assert 0 <= st < en <= self.n, (st, en, self.n)
            return Reg(self.f, self.b + st, en - st)
        assert 0 <= i < self.n, (i, self.n)
        return Reg(self.f, self.b + i, 1)

    def set(self):
        return {(self.f, self.b + i) for i in range(self.n)}


class Alloc:
    def __init__(self, f, start, end):
        self.f, self.p, self.end = f, start, end

    def __call__(self, n=1, align=1):
        self.p = (self.p + align - 1) // align * align
        r = Reg(self.f, self.p, n)
        self.p += n
        assert self.p <= self.end, f"out of {self.f} regs: {self.p} > {self.end}"
        return r


class Gen:
    def __init__(self):
        self.lines = []
        self.lgkm = []
        self.vm = []

    def __call__(self, s):
        self.lines.append("    " + s)

    def label(self, l):
        self.lines.append(l + ":")

    def comment(self, s):
        self.lines.append("    ; " + s)

    def raw(self, s):
        self.lines.append(s)

    def ds(self, s, tag):
        self(s)
        self.lgkm.append(tag)

    def vmem(self, s, tag):
        self(s)
        self.vm.append(tag)

    def need_lgkm(self, pred, force=False):
        idx = -1
        for i, t in enumerate(self.lgkm):
            if pred(t):
                idx = i
        if idx < 0:
            return None
        n = len(self.lgkm) - 1 - idx
        self.lgkm = self.lgkm[idx + 1:]
        assert n <= 15, n
        return n

    def wait_lgkm(self, pred):
        n = self.need_lgkm(pred)
        if n is not None:
            self(f"s_waitcnt lgkmcnt({n})")

    def need_vm(self, pred):
        idx = -1
        for i, t in enumerate(self.vm):
            if pred(t):
                idx = i
        if idx < 0:
            return None
        n = len(self.vm) - 1 - idx
        if n > 60:
            n = 60
            idx = len(self.vm) - 1 - n
        self.vm = self.vm[idx + 1:]
        return n

    def wait_vm(self, pred):
        n = self.need_vm(pred)
        if n is not None:
            self(f"s_waitcnt vmcnt({n})")

    def wait_both(self, vpred, lpred):
        a = self.need_vm(vpred) if vpred else None
        b = self.need_lgkm(lpred) if lpred else None
        parts = ([f"vmcnt({a})"] if a is not None else []) + ([f"lgkmcnt({b})"] if b is not None else [])
        if parts:
            self("s_waitcnt " + " ".join(parts))
        return bool(parts)

    def wait_all(self):
        self("s_waitcnt vmcnt(0) lgkmcnt(0)")
        self.vm = []
        self.lgkm = []

    def wait_lgkm0(self):
        self("s_waitcnt lgkmcnt(0)")
        self.lgkm = []

    def wait_vm0(self):
        self("s_waitcnt vmcnt(0)")
        self.vm = []

    def text(self):
        return "\n".join(self.lines) + "\n"


_REG = re.compile(r"^(-|\|)?(abs\()?([vas])(\d+|\[(\d+):(\d+)\])\)?\|?$")


def _regs(tok):
    tok = tok.strip()
    m = _REG.match(tok)
    if not m:
        if tok in ("vcc",):
            return {("s", 106), ("s", 107)}
        if tok == "m0":
            return {("s", 124)}
        if tok == "exec":
            return {("s", 126), ("s", 127)}
        return set()
    f = m.group(3)
    if m.group(5):
        return {(f, i) for i in range(int(m.group(5)), int(m.group(6)) + 1)}
    return {(f, int(m.group(4)))}


TRANS = ("v_exp_", "v_log_", "v_rcp_", "v_rsq_", "v_sqrt_", "v_sin_", "v_cos_")


class I:
    def __init__(self, line):
        self.line = line
        s = line.split(";")[0].strip()
        p = s.split(None, 1)
        self.mn = p[0]
        ops = []
        if len(p) > 1:
            depth = 0
            cur = ""
            for ch in p[1]:
                if ch == "[":
                    depth += 1
                if ch == "]":
                    depth -= 1
                if ch == "," and depth == 0:
                    ops.append(cur.strip())
                    cur = ""
                else:
                    cur += ch
            ops.append(cur.strip())
        self.mods = ""
        if ops:
            q = ops[-1].split(None, 1)
            ops[-1] = q[0]
            self.mods = q[1] if len(q) > 1 else ""
        self.ops = ops
        mn = self.mn
        self.is_mfma = mn.startswith("v_mfma")
        self.is_valu = mn.startswith("v_") and not self.is_mfma
        self.is_trans = mn.startswith(TRANS)
        self.is_ds = mn.startswith("ds_")
        self.is_vmem = mn.startswith(("buffer_", "global_"))
        self.is_salu = mn.startswith("s_")
        R = [_regs(o) for o in ops]
        self.w = set()
        self.r = set()
        self.srcc = set()
        self.ab = set()
        if self.is_mfma:
            self.w = R[0]
            self.ab = R[1] | R[2]
            self.srcc = R[3]
            self.r = self.ab | self.srcc
            self.passes = 8 if "32x32x16" in mn else 4 if "16x16x32" in mn else None
            assert self.passes, mn
        elif self.is_valu:
            if mn.startswith("v_cmp"):
                self.w = R[0]
                self.r = set().union(*R[1:])
                if mn.startswith("v_cmpx"):
                    self.w |= _regs("exec")
            elif mn.startswith(("v_permlane32_swap", "v_permlane16_swap", "v_swap")):
                self.w = R[0] | R[1]
                self.r = R[0] | R[1]
            elif mn.startswith(("v_add_co", "v_sub_co", "v_addc_co", "v_div_scale")):
                self.w = R[0] | R[1]
                self.r = set().union(*R[2:])
            elif mn == "v_nop":
                pass
            else:
                self.w = R[0]
                self.r = set().union(*R[1:]) if len(R) > 1 else set()
                if mn.startswith(("v_fmac", "v_dot2c", "v_pk_fmac", "v_writelane")) or "dpp" in mn or "row_" in self.mods:
                    self.r |= R[0]
        elif self.is_ds:
            if mn.startswith("ds_read") or mn.startswith("ds_bpermute") or mn.startswith("ds_swizzle") or "_rtn" in mn:
                self.w = R[0]
                self.r = set().union(*R[1:])
            else:
                self.r = set().union(*R)
        elif self.is_vmem:
            lds = " lds" in (" " + self.mods)
            if mn in ("buffer_wbl2", "buffer_inv"):
                pass
            elif "load" in mn and not lds and "lds" not in mn:
                self.w = R[0]
                self.r = set().union(*R[1:])
            else:
                self.r = set().union(*R)
                if "atomic" in mn and "sc0" in self.mods:
                    self.w = R[0]
            self.lds_dma = lds or "lds" in mn
            self.wide_store = "store" in mn and ("x3" in mn or "x4" in mn)
            self.data = R[0] if mn.startswith("buffer_store") else (R[1] if mn.startswith("global_store") else set())
        elif self.is_salu:
            if mn.startswith(("s_cmp", "s_waitcnt", "s_nop", "s_barrier", "s_branch", "s_cbranch", "s_endpgm", "s_sleep", "s_setprio", "s_bitcmp")):
                self.r = set().union(*R) if R else set()
            else:
                self.w = R[0] if R else set()
                self.r = set().union(*R[1:]) if len(R) > 1 else set()
                if "saveexec" in mn:
                    self.w |= _regs("exec")
        self.states = 1
        if mn == "s_nop":
            self.states = int(ops[0], 0) + 1


def check_hazards(lines, verbose=True):
    ins = []
    for l in lines:
        s = l.split(";")[0].strip()
        if not s or s.endswith(":") or s.startswith("."):
            continue
        ins.append(I(s))
    bad = []
    for j, c in enumerate(ins):
        dist = 0
        for i in range(j - 1, max(-1, j - 24), -1):
            p = ins[i]
            need = 0
            why = ""
            if p.is_mfma:
                big = {8: 12, 4: 8}[p.passes]
                if c.is_mfma:
                    if p.w & c.ab:
                        need, why = big, "mfma D -> mfma A/B"
                    elif p.w & c.srcc:
                        if not (p.w == c.srcc and p.passes == c.passes):
                            need, why = {8: 10, 4: 6}[p.passes], "mfma D -> mfma C partial"
                    elif p.w & c.w and not (p.w == c.w):
                        need, why = big, "mfma D -> mfma D partial WAW"
                elif c.is_valu or c.is_ds or c.is_vmem:
                    if p.w & (c.r | c.w):
                        need, why = big, "mfma D -> valu/mem"
                    elif c.is_valu and (p.srcc & c.w):
                        need, why = {8: 7, 4: 3}[p.passes], "mfma C read -> valu write WAR"
            elif p.is_valu:
                vw = {x for x in p.w if x[0] in "va"}
                sw = {x for x in p.w if x[0] == "s"}
                if c.is_mfma and vw & c.r:
                    need, why = 2, "valu -> mfma"
                elif c.is_mfma and (("s", 126) in sw):
                    need, why = 4, "valu exec -> mfma"
                elif c.mn.startswith("v_permlane") and vw & c.r:
                    need, why = 2, "valu -> permlane"
                elif c.mn.startswith(("v_readlane", "v_readfirstlane")) and vw & c.r:
                    need, why = 1, "valu -> readlane"
                elif c.is_valu and ("dpp" in c.mn or "row_" in c.mods or "quad_perm" in c.mods) and vw & c.r:
                    need, why = 2, "valu -> dpp"
                elif p.is_trans and c.is_valu and not c.is_trans and vw & c.r:
                    need, why = 1, "trans -> valu"
                elif ("sdwa" in p.mn or "op_sel:" in p.mods) and c.is_valu and vw & (c.r | c.w) and "dst_sel:DWORD" not in p.mods and not p.mn.startswith("v_pk"):
                    need, why = 1, "sdwa/opsel -> valu"
                if sw:
                    if c.is_vmem and sw & c.r:
                        need, why = max(need, 5), "valu sgpr -> vmem"
                    elif c.is_valu and sw & c.r:
                        need, why = max(need, 4 if c.mn.startswith(("v_readlane", "v_writelane")) else 2), "valu sgpr -> valu"
                    elif c.mn.startswith("v_cndmask") and len(c.ops) == 3 and ("s", 106) in sw:
                        need, why = max(need, 2), "valu vcc -> cndmask"
                    elif c.is_salu and sw & c.r:
                        need, why = max(need, 1), "valu sgpr -> salu (pad)"
            elif p.is_salu:
                if ("s", 124) in p.w and c.is_vmem and c.lds_dma:
                    need, why = 1, "m0 -> lds dma"
            elif p.is_vmem:
                if getattr(p, "wide_store", False) and p.data & c.w and not c.is_salu:
                    need, why = 2, "store data WAR"
            if need > dist:
                bad.append((j, i, need, dist, why, p.line, c.line))
            dist += p.states
    NOSCC = ("s_mov", "s_cselect", "s_waitcnt", "s_nop", "s_barrier", "s_mul_i32", "s_load", "s_mem", "s_getreg", "s_cbranch", "s_branch", "s_getpc", "s_bitset", "s_sleep", "s_atomic", "s_endpgm")
    for j, c in enumerate(ins):
        if c.mn.startswith("s_cselect"):
            for i in range(j - 1, -1, -1):
                p = ins[i]
                if p.is_salu and not p.mn.startswith(NOSCC):
                    if not p.mn.startswith(("s_cmp", "s_bitcmp")):
                        bad.append((j, i, 0, 0, "SCC clobbered before select", p.line, c.line))
                    break
    if verbose:
        for b in bad[:40]:
            print(f"HAZARD {b[4]}: need {b[2]} have {b[3]}\n    {b[5]}\n    {b[6]}")
    return bad


def kernel_footer(name, vgpr, sgpr, accum):
    return f""".section .rodata,"a"
.p2align 6
.amdhsa_kernel {name}
  .amdhsa_next_free_vgpr {vgpr}
  .amdhsa_next_free_sgpr {sgpr}
  .amdhsa_accum_offset {accum}
  .amdhsa_group_segment_fixed_size 0
  .amdhsa_kernarg_size 96
  .amdhsa_user_sgpr_count 2
  .amdhsa_user_sgpr_kernarg_segment_ptr 1
  .amdhsa_system_sgpr_workgroup_id_x 1
.end_amdhsa_kernel
"""


def kernel_header(name):
    return f""".text
.globl {name}
.p2align 8
.type {name},@function
{name}:
"""


def build(asm, path_base, kernel_name, n_ptrs=12):
    from cdna_launch import with_harness_metadata, address_register_problem, launch_list_of, launch_list_kernel_names
    open(path_base + ".s", "w").write(asm)
    h = with_harness_metadata(asm, kernel_name, n_ptrs, launch_lists=True)
    open(path_base + ".harness.s", "w").write(h)
    r = subprocess.run(["clang", "-x", "assembler", "-target", "amdgcn-amd-amdhsa", "-mcpu=gfx950",
                        path_base + ".harness.s", "-o", path_base + ".co"], capture_output=True, text=True)
    os.remove(path_base + ".harness.s")
    if r.returncode != 0:
        print(r.stderr[:4000])
        raise SystemExit(1)
    launches = launch_list_of(asm, True)
    prob = address_register_problem(path_base + ".co", kernel_name, None if launches is None else launch_list_kernel_names(launches))
    if prob:
        print(prob)
        raise SystemExit(1)
```

```python
from asmlib import *

MF = "v_mfma_f32_16x16x32_bf16"


class Cfg:
    D = 6
    G0 = -8
    chain = True
    vmode = 0
    ones = False
    no_dma = False
    no_barrier = False
    dma_groups = [2, 3, 4, 5, 6, 7, 8, 9]
    dma_win = 0
    KBASE = 98304
    VBASE = 32768
    vslot = [0, 1, 2, 3]
    kslot = [0, 1, 2, 3]
    dma_mod = ""
    stamps = False


class Regs:
    pass


def lane_consts(g, R, cfg, tmp, lane, wave_s):
    t0, t1, t2, t3 = tmp[0], tmp[1], tmp[2], tmp[3]
    g(f"v_and_b32 {t0}, 15, {lane}")
    g(f"v_lshrrev_b32 {t1}, 4, {lane}")
    g(f"v_xor_b32 {t1}, {t1}, {t0}")
    if getattr(R, "spar8", None):
        g(f"v_xor_b32 {t1}, {R.spar8}, {t1}")
    g(f"v_and_b32 {t2}, 12, {t0}")
    g(f"v_add_u32 {t2}, {t2}, {t0}")
    g(f"v_lshlrev_b32 {t2}, 8, {t2}")
    g(f"v_add_u32 {t2}, {cfg.KBASE}, {t2}")
    for kk in range(4):
        g(f"v_xor_b32 {t3}, {4*kk}, {t1}")
        g(f"v_lshl_add_u32 {R.kaddr[kk]}, {t3}, 4, {t2}")
    g(f"v_lshrrev_b32 {t0}, 2, {lane}")
    g(f"v_and_b32 {t0}, 7, {t0}")
    g(f"v_lshrrev_b32 {t1}, 4, {lane}")
    g(f"v_and_b32 {t2}, 3, {t0}")
    g(f"v_lshl_add_u32 {t1}, {t1}, 3, {t2}")
    g(f"v_lshlrev_b32 {t1}, 8, {t1}")
    g(f"v_and_b32 {t2}, 3, {lane}")
    g(f"v_lshl_add_u32 {t1}, {t2}, 3, {t1}")
    g(f"v_add_u32 {t1}, {cfg.VBASE}, {t1}")
    for db in range(8):
        g(f"v_xor_b32 {t2}, {db}, {t0}")
        g(f"v_lshl_add_u32 {R.vaddr[db]}, {t2}, 5, {t1}")
    g(f"v_lshrrev_b32 {t0}, 4, {lane}")
    g(f"s_lshl_b32 {R.stmp}, {wave_s}, 12")
    g(f"v_lshl_add_u32 {t1}, {t0}, 8, {R.stmp}")
    g(f"v_and_b32 {t2}, 15, {lane}")
    g(f"v_xor_b32 {t3}, {t2}, {t0}")
    g(f"s_lshl_b32 {R.stmp}, {wave_s}, 3")
    g(f"s_and_b32 {R.stmp}, {R.stmp}, 8")
    g(f"v_xor_b32 {t3}, {R.stmp}, {t3}")
    g(f"v_lshl_add_u32 {R.kdma[0]}, {t3}, 4, {t1}")
    g(f"v_xor_b32 {t3}, 4, {t3}")
    g(f"v_lshl_add_u32 {R.kdma[1]}, {t3}, 4, {t1}")
    g(f"v_lshlrev_b32 {t3}, 1, {t0}")
    g(f"v_xor_b32 {t3}, {t3}, {t2}")
    g(f"v_lshl_add_u32 {R.vdma[0]}, {t3}, 4, {t1}")
    g(f"v_xor_b32 {t3}, 8, {t3}")
    g(f"v_lshl_add_u32 {R.vdma[1]}, {t3}, 4, {t1}")


def set_m0(g, R, cfg, which, tile):
    base = cfg.KBASE + cfg.kslot[tile % 4] * 16384 if which == "K" else cfg.VBASE + cfg.vslot[tile % 4] * 16384
    g(f"s_add_u32 m0, {R.swoff}, {base}")


def dma_ops(g, R, cfg, which, tile, with_m0=True):
    ops = []
    for b in range(4):
        def f(b=b):
            if b == 0 and with_m0:
                set_m0(g, R, cfg, which, tile)
                g("s_nop 0")
            va = R.kdma[b >> 1] if which == "K" else R.vdma[b >> 1]
            srd = R.srdK if which == "K" else R.srdV
            off = f" offset:{b*1024}" if b else ""
            g.vmem(f"buffer_load_dwordx4 {va}, {srd}, {R.stile} offen{off}{cfg.dma_mod} lds", (which, tile))
        ops.append(f)
    return ops


def frag_desc(n):
    i, f = divmod(n, 16)
    if f < 8:
        return ("V", i - 1, f)
    return ("K", i + 1, f - 8)


def frag_exists(n):
    return 0 <= frag_desc(n)[1] < 64


def fbuf(R, n):
    return R.frag[(n % 16) * 4:(n % 16) * 4 + 4]


def read_ops(g, R, cfg, n, buf=None):
    kind, half, idx = frag_desc(n)
    buf = buf or fbuf(R, n)
    tile, hb = divmod(half, 2)
    if kind == "K":
        kb, kk = divmod(idx, 4)
        off = cfg.kslot[tile % 4] * 16384 + hb * 8192 + kb * 1024
        return [lambda: g.ds(f"ds_read_b128 {buf}, {R.kaddr[kk]} offset:{off}", ("F", n))]
    off = cfg.vslot[tile % 4] * 16384 + hb * 8192
    return [lambda: g.ds(f"ds_read_b64_tr_b16 {buf[0:2]}, {R.vaddr[idx]} offset:{off}", ("F", n)),
            lambda: g.ds(f"ds_read_b64_tr_b16 {buf[2:4]}, {R.vaddr[idx]} offset:{off+1024}", ("F", n))]


def sm_pair(R, cfg, i, grp):
    p = grp - cfg.G0 // 4
    half = i + p // 16
    p %= 16
    return half, p // 4, 2 * (p % 4)


def mfma_desc(R, cfg, i, w, first_pv=False):
    if w < 32:
        db, qb = divmod(w, 4)
        n = 16 * i + db
        half = i - 1
        P = R.S[half & 1][qb][0:4]
        O = R.O[db][qb]
        return n, f"{MF} {O}, {fbuf(R, n)}, {P}, {'0' if first_pv else O}"
    w -= 32
    kb = w // 16
    if cfg.chain:
        qb, kk = divmod(w % 16, 4)
    else:
        kk, qb = divmod(w % 16, 4)
    n = 16 * i + 8 + 4 * kb + kk
    half = i + 1
    S = R.S[half & 1][qb][4 * kb:4 * kb + 4]
    return n, f"{MF} {S}, {fbuf(R, n)}, {R.Q[kk][qb]}, {R.negm[qb] if kk == 0 else S}"


def emit_group(g, R, cfg, i, grp, first_pv=False, xs=None, dma=None, mf=True, reads=True, valu=None, mf_over=None, rd_over=None):
    xs = xs or {}
    half, qb, j = sm_pair(R, cfg, i, grp)
    sm = 0 <= half < 64
    S = R.S[half & 1][qb]
    e0 = lambda: g(f"v_exp_f32 {S[j]}, {S[j]}")
    e1 = lambda: g(f"v_exp_f32 {S[j+1]}, {S[j+1]}")
    a0 = lambda: g(f"v_add_f32 {R.l[qb]}, {R.l[qb]}, {S[j]}")
    a1 = lambda: g(f"v_add_f32 {R.l[qb]}, {R.l[qb]}, {S[j+1]}")
    cv = lambda: g(f"v_cvt_pk_bf16_f32 {S[j//2]}, {S[j]}, {S[j+1]}")
    nrd = 16 * i + grp + cfg.D
    rd = read_ops(g, R, cfg, nrd) if (frag_exists(nrd) and reads) else []
    rd_extra = []
    if rd_over is not None and grp in rd_over:
        rd = rd_over[grp][:2]
        rd_extra = rd_over[grp][2:]
    plan = [[], [], [], []]
    if cfg.ones:
        plan[0] = [e0]
        plan[1] = rd[:]
        plan[2] = [e1]
        plan[3] = [cv]
    elif len(rd) <= 1:
        plan[0] = [e0]
        plan[1] = rd + [a0]
        plan[2] = [e1]
        plan[3] = [a1, cv]
    elif cfg.vmode == 0:
        plan[0] = [e0]
        plan[1] = [rd[0], a0]
        plan[2] = [e1]
        plan[3] = [rd[1], a1, cv]
    elif cfg.vmode == 1:
        plan[0] = [e0]
        plan[1] = [rd[0], rd[1]]
        plan[2] = [e1]
        plan[3] = [a0, a1, cv]
    elif cfg.vmode == 2:
        plan[0] = [rd[0], e0]
        plan[1] = [rd[1], a0]
        plan[2] = [e1]
        plan[3] = [a1, cv]
    if rd_extra:
        plan[0] = [rd_extra[0]] + plan[0]
        plan[2] = [rd_extra[1]] + plan[2]
        rd = rd + rd_extra
    if not sm:
        plan = [[f for f in p if f in rd] for p in plan]
    if dma:
        plan[cfg.dma_win] = [dma] + plan[cfg.dma_win]
    for w4 in range(4):
        w = 4 * grp + w4
        n, txt = mfma_desc(R, cfg, i, w, first_pv)
        have = frag_exists(n) and mf
        if mf_over is not None and w in mf_over:
            n, txt = mf_over[w]
            have = True
        if have:
            g.wait_lgkm(lambda t: t[0] == "F" and t[1] <= n)
            g(txt)
        elif sm:
            g("s_nop 0")
        for fn in xs.get(w4, []):
            fn()
        if w4 in (0, 2) and not xs.get(w4) and not (dma and cfg.dma_win == w4) and not (plan[w4] and plan[w4][0] in rd):
            need = -10**9
            for dw in (1, 2):
                ii, ww = (i, w + dw) if w + dw < 64 else (i + 1, w + dw - 64)
                nn, _ = mfma_desc(R, cfg, ii, ww)
                if mf_over is not None:
                    if ii == i and ww in mf_over:
                        need = max(need, mf_over[ww][0])
                        continue
                    if ii > i:
                        continue
                if frag_exists(nn):
                    need = max(need, nn)
            g.wait_lgkm(lambda t: t[0] == "F" and t[1] <= need)
        for fn in plan[w4]:
            fn()
        if valu:
            for _ in range(2 - min(2, len(plan[w4]))):
                if valu:
                    valu.pop(0)()
    if cfg.ones and grp in (1, 3, 5, 7) and frag_exists(16 * i + grp) and mf:
        q = grp // 2
        P = R.S[(i - 1) & 1][q][0:4]
        g(f"{MF} {R.L[q]}, {R.ones}, {P}, {'0' if first_pv else R.L[q]}")


def step_extras(g, R, cfg, i, dma=True, alt=None, xtra=None, alt_groups=None, bar_wait=None):
    ex = {}

    def add_x(gp, w, fns):
        xs, d = ex.get(gp, ({}, None))
        xs.setdefault(w, []).extend(fns)
        ex[gp] = (xs, d)

    def add_d(gp, op):
        xs, d = ex.get(gp, ({}, None))
        assert d is None
        ex[gp] = (xs, op)
    if i % 2 == 0:
        e = i // 2
        if e <= 31:
            def bar(e=e):
                if bar_wait:
                    bar_wait()
                g.wait_vm(lambda t: t in (("K", e + 1), ("V", e), ("K", e)))

            def bar2():
                if not cfg.no_barrier:
                    g("s_barrier")
            add_x(15 - cfg.D, 2, [bar])
            add_x(16 - cfg.D, 0, [bar2])
    else:
        e = (i - 1) // 2
        if dma and e + 3 <= 31 and not cfg.no_dma:
            ops = dma_ops(g, R, cfg, "K", e + 3, False) + dma_ops(g, R, cfg, "V", e + 3, False)
            for j, (gp, op) in enumerate(zip(cfg.dma_groups, ops)):
                add_d(gp, op)
                if j % 4 == 0:
                    which = "KV"[j // 4]
                    add_x(gp - 1, 2, [lambda which=which: set_m0(g, R, cfg, which, e + 3)])
            add_x(15, 0, [lambda: g(f"s_add_u32 {R.stile}, {R.stile}, 16384")])
    if alt:
        groups = alt_groups or [gp for gp in range(1, 16) if gp != 16 - cfg.D]
        assert len(alt) <= len(groups)
        for gp, (setup, op) in zip(groups, alt):
            add_d(gp, op)
            if setup:
                add_x(gp - 1, 2, setup)
    for (gp, w), fns in (xtra or {}).items():
        add_x(gp, w, fns)
    return ex


def emit_step(g, R, cfg, i, first_pv=False, groups=range(16), dma=True, alt=None, xtra=None, alt_groups=None, bar_wait=None, **kw):
    ex = step_extras(g, R, cfg, i, dma, alt, xtra, alt_groups, bar_wait)
    for grp in groups:
        xs, d = ex.get(grp, ({}, None))
        emit_group(g, R, cfg, i, grp, first_pv, xs, d, **kw)
```

```python
from asmlib import *
from attn16 import MF, Regs, lane_consts, set_m0, dma_ops, frag_desc, frag_exists


class Cfg:
    G0 = -8
    no_dma = False
    no_barrier = False
    dma_groups = [5, 6, 7, 8, 9, 10, 11, 12]
    KBASE = 98304
    VBASE = 32768
    vslot = [0, 1, 2, 3]
    kslot = [0, 1, 2, 3]
    dma_mod = ""
    stamps = False
    ones = True
    ones_groups = (1, 3, 5, 7)
    kread = {5: [0, 1], 6: [2, 3], 7: [4], 8: [5], 9: [6], 10: [7]}
    BAR = 13
    D = 3
    hyb_range = (0, -1)
    hyb_groups = (3, 7)
    l_groups = (11, 12)
    l_ones = 2
    dones_range = (0, -1)

    def hyb(self, half):
        return self.hyb_range[0] <= half <= self.hyb_range[1]

    def dones(self, i):
        return self.dones_range[0] <= i <= self.dones_range[1]

    def og(self, i):
        return self.hyb_groups if self.hyb(i - 1) else self.ones_groups


def fbuf(R, n):
    f = n % 16
    return R.vfrag[(f % 4) * 4:(f % 4) * 4 + 4] if f < 8 else R.kfrag[(f - 8) * 4:(f - 8) * 4 + 4]


def read_ops(g, R, cfg, n, buf=None):
    kind, half, idx = frag_desc(n)
    buf = buf or fbuf(R, n)
    tile, hb = divmod(half, 2)
    if kind == "K":
        kb, kk = divmod(idx, 4)
        off = cfg.kslot[tile % 4] * 16384 + hb * 8192 + kb * 1024
        return [lambda: g.ds(f"ds_read_b128 {buf}, {R.kaddr[kk]} offset:{off}", ("F", n))]
    off = cfg.vslot[tile % 4] * 16384 + hb * 8192
    return [lambda: g.ds(f"ds_read_b64_tr_b16 {buf[0:2]}, {R.vaddr[idx]} offset:{off}", ("F", n)),
            lambda: g.ds(f"ds_read_b64_tr_b16 {buf[2:4]}, {R.vaddr[idx]} offset:{off+1024}", ("F", n))]


def group_reads(cfg, i, grp):
    if grp in cfg.kread:
        return [16 * i + 8 + f for f in cfg.kread[grp]]
    if grp <= 4:
        return [16 * i + grp + 3]
    if grp >= 13:
        return [16 * (i + 1) + grp - 13]
    return []


def sm_pair(cfg, i, grp):
    p = grp - cfg.G0 // 4
    half = i + p // 16
    p %= 16
    if cfg.hyb(half):
        return half, 2 * (p // 8) + (p & 1), 2 * ((p % 8) // 2)
    return half, p // 4, 2 * (p % 4)


def mfma_desc(R, cfg, i, w, first_pv=False):
    if w < 32:
        db, qb = divmod(w, 4)
        n = 16 * i + db
        P = R.S[(i - 1) & 1][qb][0:4]
        O = R.O[db][qb]
        return n, f"{MF} {O}, {fbuf(R, n)}, {P}, {'0' if first_pv else O}"
    w -= 32
    kb = w // 16
    qb, kk = divmod(w % 16, 4)
    n = 16 * i + 8 + 4 * kb + kk
    S = R.S[(i + 1) & 1][qb][4 * kb:4 * kb + 4]
    return n, f"{MF} {S}, {fbuf(R, n)}, {R.Q[kk][qb]}, {R.negm[qb] if kk == 0 else S}"


def ones_mfma(R, half, q, first):
    return f"{MF} {R.lq}, {R.ones[q]}, {R.S[half & 1][q][0:4]}, {'0' if first else R.lq}"


def check_p(R, txt):
    ops = [o.strip() for o in txt.split(None, 1)[1].split(", ")]
    for b in range(2):
        for q in range(4):
            if ops[2] == str(R.S[b][q][0:4]):
                h = max(hh for (hh, qq) in R.done if qq == q and hh % 2 == b)
                assert R.done[(h, q)] == 4, (txt, h, q, R.done[(h, q)])


def flush_cvt(g, R):
    for f in R.pend:
        f()
    R.pend = []


def emit_group(g, R, cfg, i, grp, first_pv=False, xs=None, dma=None, mf=True, reads=True, valu=None, mf_over=None, rd_over=None, ones_over=None):
    xs = xs or {}
    half, qb, j = sm_pair(cfg, i, grp)
    sm = 0 <= half < 64
    S = R.S[half & 1][qb]
    e0 = lambda: g(f"v_exp_f32 {S[j]}, {S[j]}")
    e1 = lambda: g(f"v_exp_f32 {S[j+1]}, {S[j+1]}")
    def cv():
        g(f"v_cvt_pk_bf16_f32 {S[j//2]}, {S[j]}, {S[j+1]}")
        R.done[(half, qb)] = R.done.get((half, qb), 0) + 1
    rd = []
    if rd_over is not None and grp in rd_over:
        rd = list(rd_over[grp])
    elif reads:
        for n in group_reads(cfg, i, grp):
            if frag_exists(n):
                rd += read_ops(g, R, cfg, n)
    plan = [[e0] if sm else [], rd[:2], [e1] if sm else [], rd[2:]]
    assert len(rd) <= 4
    hy = sm and cfg.hyb(half)
    while R.pend and len(plan[1]) < 2 and not hy:
        plan[1].append(R.pend.pop(0))
    if sm:
        R.pend.append(cv)
    if hy:
        if dma:
            assert not plan[1]
            plan[1] = [dma]
        if sm and qb % 2 == 0:
            assert len(R.pend) == 1 and not plan[3], (i, grp, len(R.pend))
            plan[3] = [lambda: g(f"v_add_f32 {R.lv[qb//2]}, {R.lv[qb//2]}, {S[j]}"), lambda: g(f"v_add_f32 {R.lv[qb//2]}, {R.lv[qb//2]}, {S[j+1]}")]
        else:
            while R.pend and len(plan[3]) < 2:
                plan[3].append(R.pend.pop(0))
    elif dma:
        assert not plan[3]
        plan[3] = [dma]
        assert len(R.pend) <= 2, "conversions fall too far behind"
    else:
        while R.pend and len(plan[3]) < 2:
            plan[3].append(R.pend.pop(0))

    def need_of(ii, ww):
        if mf_over is not None:
            if ii == i and ww in mf_over:
                return mf_over[ww][0]
            if ii > i:
                return None
        nn, _ = mfma_desc(R, cfg, ii, ww)
        return nn if frag_exists(nn) else None

    def prewait(w, span):
        ns = [need_of(*((i, w + d) if w + d < 64 else (i + 1, w + d - 64))) for d in range(1, span + 1)]
        ns = {n for n in ns if n is not None}
        return g.wait_both(None, lambda t: t[0] == "F" and t[1] in ns)
    has_ones = (grp in cfg.og(i) and frag_exists(16 * i + grp) and mf) if ones_over is None else grp in ones_over
    for w4 in range(4):
        w = 4 * grp + w4
        n, txt = mfma_desc(R, cfg, i, w, first_pv)
        have = frag_exists(n) and mf
        if mf_over is not None and w in mf_over:
            n, txt = mf_over[w]
            have = True
        if have:
            g.wait_lgkm(lambda t: t[0] == "F" and t[1] == n)
            check_p(R, txt)
            g(txt)
        elif sm and w4 == 3:
            g("s_nop 0")
        used = 0
        for fn in xs.get(w4, []):
            fn()
            used += 1
        if w4 in (0, 2) and not used:
            prewait(w, 2)
        for fn in plan[w4]:
            fn()
        if valu:
            for _ in range(2 - min(2, len(plan[w4]) * (2 if w4 in (0, 2) else 1))):
                if valu:
                    valu.pop(0)()
    if has_ones:
        txt = ones_over[grp] if ones_over is not None else ones_mfma(R, i - 1, 2 * cfg.og(i).index(grp) + 1 if cfg.hyb(i - 1) else cfg.og(i).index(grp), first_pv and grp == cfg.og(i)[0])
        check_p(R, txt)
        g(txt)
        for fn in xs.get(4, []):
            fn()


def step_extras(g, R, cfg, i, dma=True, alt=None, xtra=None, alt_groups=None):
    ex = {}

    def add_x(gp, w, fns):
        xs, d = ex.get(gp, ({}, None))
        xs.setdefault(w, []).extend(fns)
        ex[gp] = (xs, d)

    def add_d(gp, op):
        xs, d = ex.get(gp, ({}, None))
        assert d is None
        ex[gp] = (xs, op)
    def tile_loads(which, tile):
        ops = dma_ops(g, R, cfg, which, tile, False)
        og = cfg.og(i)[-2:][:cfg.l_ones]
        add_x((list(og) + list(cfg.l_groups))[0] - (0 if og else 1), 0 if og else 2, [lambda: set_m0(g, R, cfg, which, tile)])
        for gp in og:
            add_x(gp, 4, [ops.pop(0)])
        for gp in cfg.l_groups:
            add_d(gp, ops.pop(0))
        assert not ops
    if i % 2 == 0:
        e = i // 2
        if e <= 31:
            add_x(cfg.BAR - 1, 2, [lambda: g.wait_vm(lambda t: t in (("K", e + 1), ("V", e), ("K", e)))])
            if not cfg.no_barrier:
                add_x(cfg.BAR, 0, [lambda: g("s_barrier")])
        if cfg.dones(i) and dma and e + 2 <= 31 and not cfg.no_dma:
            tile_loads("V", e + 2)
            add_x(14, 0, [lambda: g(f"s_add_u32 {R.stile}, {R.stile}, 16384")])
    else:
        e = (i - 1) // 2
        if cfg.dones(i):
            if dma and e + 3 <= 31 and not cfg.no_dma:
                tile_loads("K", e + 3)
        elif dma and e + 3 <= 31 and not cfg.no_dma:
            ops = dma_ops(g, R, cfg, "K", e + 3, False) + dma_ops(g, R, cfg, "V", e + 3, False)
            for j, (gp, op) in enumerate(zip(cfg.dma_groups, ops)):
                add_d(gp, op)
                if j % 4 == 0:
                    add_x(gp, 0, [lambda which="KV"[j // 4]: set_m0(g, R, cfg, which, e + 3)])
            add_x(14, 0, [lambda: g(f"s_add_u32 {R.stile}, {R.stile}, 16384")])
    if alt:
        assert len(alt) <= len(alt_groups)
        for gp, (setup, op) in zip(alt_groups, alt):
            add_d(gp, op)
            if setup:
                add_x(gp, 0, setup)
    for (gp, w), fns in (xtra or {}).items():
        add_x(gp, w, fns)
    return ex


def emit_step(g, R, cfg, i, first_pv=False, groups=range(16), dma=True, alt=None, xtra=None, alt_groups=None, **kw):
    ex = step_extras(g, R, cfg, i, dma, alt, xtra, alt_groups)
    for grp in groups:
        xs, d = ex.get(grp, ({}, None))
        emit_group(g, R, cfg, i, grp, first_pv, xs, d, **kw)
```

```python
import sys, math, struct
from asmlib import *
import attn16 as at
from attn16 import MF

KN = "recurrent_scan__gqa_block_cached__glu_gated_bilinear__prompt"
C_SCALE = 1.4426950408889634 / math.sqrt(128.0)
U = 16384
H_BASE = 0
SP_BASE = 8 << 20
FL_BASE = 32 << 20
ST_BASE = 64 << 20
RING_GQ = [4, 5, 6, 7, 8, 9]
RING_OD = [8, 4, 9, 5, 6, 7]
L_LIMIT = 2.0 ** 40
SPIN = 1 << 17


def fbits(x):
    return "0x%08x" % struct.unpack("<I", struct.pack("<f", x))[0]


class Opt:
    stamps = False
    lead = 2
    codepf = True
    hbits = 0
    rot = True
    fill_at = (0, 0, 6, 6, 12, 12)
    flag_piece = 9
    poll_piece = 13
    force_slow = False
    attn = {}


class K:
    def __init__(self, opt):
        self.g = Gen()
        self.opt = opt
        self.nst = 0
        self.names = []


def srd(g, dst, ptr, size, off=None):
    if off is None:
        g(f"s_mov_b32 {dst[0]}, {ptr[0]}")
        g(f"s_mov_b32 {dst[1]}, {ptr[1]}")
    else:
        g(f"s_add_u32 {dst[0]}, {ptr[0]}, {off}")
        g(f"s_addc_u32 {dst[1]}, {ptr[1]}, 0")
    g(f"s_mov_b32 {dst[2]}, {size}")
    g(f"s_mov_b32 {dst[3]}, 0x20000")


def stamp(k, R, name):
    if not k.opt.stamps:
        return
    g = k.g
    k.names.append(name)
    g(f"s_memtime {R.st}")
    g(f"s_memrealtime {R.st2}")
    g.wait_lgkm0()
    g(f"v_writelane_b32 v254, {R.st[0]}, {k.nst}")
    g(f"v_writelane_b32 v255, {R.st2[0]}, {k.nst}")
    k.nst += 1


def tr_addrs(g, dst, lane, tmp, swoff, split):
    t0, t1, t2 = tmp[0], tmp[1], tmp[2]
    o = []
    o.append(f"v_bfe_u32 {t0}, {lane}, 3, 2")
    o.append(f"v_lshrrev_b32 {t1}, 4, {lane}")
    o.append(f"v_bfe_u32 {t2}, {lane}, 2, 2")
    o.append(f"v_lshl_add_u32 {t1}, {t1}, {2 if split else 3}, {t2}")
    o.append(f"v_and_b32 {t2}, 3, {lane}")
    o.append(f"v_lshl_add_u32 {t1}, {t1}, 4, {t2}")
    o.append(f"v_lshl_add_u32 {t1}, {t1}, 3, {swoff}")
    o.append(f"v_add_u32 {t1}, {4*U}, {t1}")
    for nb in range(4):
        o.append(f"v_xor_b32 {t2}, {nb}, {t0}")
        o.append(f"v_lshl_add_u32 {dst[0][nb]}, {t2}, 5, {t1}")
        o.append(f"v_add_u32 {dst[1][nb]}, {4*U}, {dst[0][nb]}")
    return o


def dma_voffs(g, dst, lane, tmp, stride, split):
    t0, t1, t2 = tmp[0], tmp[1], tmp[2]
    o = []
    o.append(f"v_lshrrev_b32 {t1}, 3, {lane}")
    o.append(f"v_mul_u32_u24 {t0}, {stride}, {t1}")
    o.append(f"v_and_b32 {t1}, {6 if split else 2}, {t1}")
    o.append(f"v_and_b32 {t2}, 7, {lane}")
    o.append(f"v_xor_b32 {t1}, {t1}, {t2}")
    for b in range(4):
        if not split and b & 1:
            o.append(f"v_xor_b32 {t2}, 4, {t1}")
            o.append(f"v_lshl_add_u32 {dst[b]}, {t2}, 4, {t0}")
        else:
            o.append(f"v_lshl_add_u32 {dst[b]}, {t1}, 4, {t0}")
        if b:
            o.append(f"v_add_u32 {dst[b]}, {b*(8*stride-1024)}, {dst[b]}")
    return o


class Piece:
    def __init__(self, tag, unit, srd, voff, soff_reg, soff_setup):
        self.tag, self.unit, self.srd, self.voff, self.soff_reg = tag, unit, srd, voff, soff_reg
        self.soff_setup = soff_setup or []

    def setup(self, g, R):
        r = [(lambda s=s: g(s)) for s in self.soff_setup]
        r.append(lambda: g(f"s_add_u32 m0, {R.swoff}, {self.unit*U}"))
        return r

    def loads(self, g):
        def mk(b):
            off = f" offset:{b*1024}" if b else ""
            return lambda: g.vmem(f"buffer_load_dwordx4 {self.voff[b]}, {self.srd}, {self.soff_reg} offen{off} lds", self.tag)
        return [mk(b) for b in range(4)]

    def emit_now(self, g, R):
        for f in self.setup(g, R):
            f()
        g("s_nop 0")
        for f in self.loads(g):
            f()

    def alt(self, g, R):
        ld = self.loads(g)
        return [(self.setup(g, R), ld[0])] + [([], f) for f in ld[1:]]


def gemm(k, R, npieces, unit_of, tag_of, tr, split, acc_of, b_of, next_piece, AF, b_reads=None, extra=None, fill=None):
    g = k.g
    L = k.opt.lead
    nfr = 4 * npieces
    NB = AF.n // 4

    def a_reads(n):
        h, nb = divmod(n, 4)
        u = unit_of(h)
        st, off = (0, (u - 4) * U) if u < 8 else (1, (u - 8) * U)
        buf = AF[(n % NB) * 4:(n % NB) * 4 + 4]
        dt = 2048 if split else 512
        return [lambda: g.ds(f"ds_read_b64_tr_b16 {buf[0:2]}, {tr[st][nb]} offset:{off}", ("A", n)),
                lambda: g.ds(f"ds_read_b64_tr_b16 {buf[2:4]}, {tr[st][nb]} offset:{off+dt}", ("A", n))]

    for n in range(min(L, nfr)):
        if n % 4 == 0:
            g.wait_vm(lambda t: t == tag_of(n // 4))
        for f in a_reads(n):
            f()
    pieces = [next_piece(h) for h in range(npieces)] + [None]
    sus = [p.setup(g, R) if p else [] for p in pieces]
    for h in range(npieces):
        su = sus[h]
        if h:
            su = su[-1:]
        ld = pieces[h].loads(g) if pieces[h] else []
        br = b_reads(h) if b_reads else []
        ex = extra(h) if extra else {}
        for nb in range(4):
            n = 4 * h + nb
            buf = AF[(n % NB) * 4:(n % NB) * 4 + 4]
            for qb in range(4):
                acc, first = acc_of(h, nb, qb)
                B, btag = b_of(h, qb)
                g.wait_lgkm(lambda t: (t[0] == "A" and t[1] <= n) or (btag is not None and t == btag))
                g(f"{MF} {acc}, {buf}, {B}, {'0' if first else acc}")
                free = 2
                if qb == 0:
                    nn = n + L
                    if nn < nfr:
                        for f in a_reads(nn):
                            f()
                        free = 0
                elif qb == 1:
                    if nb == 0:
                        for f in su:
                            f()
                    if nb < len(br):
                        tg, txt = br[nb]
                        g.ds(txt, tg)
                        free = 1
                elif qb == 2:
                    if ld:
                        ld[nb]()
                        free = 0
                elif qb == 3:
                    nn = n + 1 + L
                    if nn < nfr and nn % 4 == 0:
                        g.wait_vm(lambda t: t == tag_of(nn // 4))
                    g.wait_lgkm(lambda t: t[0] == "A" and t[1] <= n + 1)
                    if nb == 3:
                        for f in sus[h + 1][:-1]:
                            f()
                for f in ex.get((nb, qb), []):
                    f()
                while fill and free > 0:
                    f = fill.pop(0)
                    free -= f() or 1


def reduce_G_ops(regs, tmps, op):
    o = []
    for sw in ("v_permlane32_swap_b32", "v_permlane16_swap_b32"):
        for r, t in zip(regs, tmps):
            o.append(f"v_mov_b32 {t}, {r}")
        o.append("s_nop 1" if len(regs) == 1 else "s_nop 0")
        for r, t in zip(regs, tmps):
            o.append(f"{sw} {t}, {r}")
        for r, t in zip(regs, tmps):
            o.append(f"{op} {r}, {t}, {r}")
    return o


def gen_kernel(opt):
    k = K(opt)
    g = k.g
    cfg = at.Cfg()
    for a, v in opt.attn.items():
        setattr(cfg, a, v)
    cfg.KBASE, cfg.VBASE = 6 * U, 2 * U
    cfg.kslot = [2, 3, 0, 1]
    cfg.vslot = [2, 3, 0, 1]
    R = at.Regs()
    emit = lambda lst: [g(x) for x in lst]
    clo = lambda lst: [(lambda x=x: g(x)) for x in lst]
    S = Alloc("s", 4, 100)
    for n in ("X", "K", "V", "WQ", "WO", "WG", "WU", "WD", "OUT", "WS", "DBG"):
        setattr(R, "srd" + n, S(4, 4))
    ptr = S(16, 4)
    ptr2 = S(8, 4)
    R.swave = S(1); R.skvh = S(1); R.sp = S(1); R.swoff = S(1); R.stmp = S(1); R.stmp2 = S(1)
    R.stile = S(1); R.sloop = S(1); srot = S(1); sslow = S(1); sxo = S(1); sfl = S(1)
    R.st = S(2, 2); R.st2 = S(2, 2); sst = S(1); spin = S(1)
    S2 = Alloc("s", ptr.b, ptr.b + 24)
    sG = S2(1); sGb = S2(1); sGl = S2(1); sQ = S2(1); sO = S2(1); sD = S2(1); sDb = S2(1); sDl = S2(1)
    sH = S2(1); sHb = S2(1); sHl = S2(1); sSP = S2(1)
    msk = [S2(2, 2) for _ in range(4)]
    ACC = lambda blk, qb: Reg("v", (blk * 4 + qb) * 4, 4)
    R.O = [[ACC(db, qb) for qb in range(4)] for db in range(8)]
    R.S = [[Reg("v", 128 + b * 32 + qb * 8, 8) for qb in range(4)] for b in range(2)]
    AF = Reg("v", 128, 32)
    BF = Reg("v", 160, 32)
    DACC = lambda nb, qb: Reg("v", 160 + (qb * 4 + nb) * 4, 4)
    V = Alloc("v", 192, 254)
    R.negm = [V(4) for _ in range(4)]
    R.l = [V(1) for _ in range(4)]
    R.kaddr = [V(1) for _ in range(4)]
    R.vaddr = [V(1) for _ in range(8)]
    R.kdma = [V(1) for _ in range(2)]
    R.vdma = [V(1) for _ in range(2)]
    tmp = V(4, 2)
    tm2 = V(4, 2)
    lane = V(1); voff16 = V(1); vhoff = V(1); voffx = V(1)
    voffS = [V(1) for _ in range(4)]
    trS = [[V(1) for _ in range(4)] for _ in range(2)]
    vpoll = V(1)
    V2 = Alloc("v", 160, 192)
    trN = [[V2(1) for _ in range(4)] for _ in range(2)]
    voffG = [V2(1) for _ in range(4)]
    voffQ = [V2(1) for _ in range(4)]
    xw = V2(1)
    lt = V2(12, 2)
    R.Q = [[Reg("a", (kk * 4 + qb) * 4, 4) for qb in range(4)] for kk in range(4)]
    R.frag = Reg("a", 64, 64)
    XB = lambda ks, qb: Reg("a", (ks * 4 + qb) * 4, 4)
    HB = lambda j, qb: Reg("a", (128 + (j * 4 + qb) * 4) % 256, 4)

    g("s_cmp_ge_u32 s2, 256")
    g("s_cbranch_scc1 L_end")
    g(f"s_load_dwordx16 {ptr}, s[0:1], 0")
    g(f"s_load_dwordx8 {ptr2}, s[0:1], 64")
    g(f"v_lshrrev_b32 {tmp[0]}, 6, v0")
    g(f"v_and_b32 {lane}, 63, v0")
    g(f"v_readfirstlane_b32 {R.swave}, {tmp[0]}")
    hb = opt.hbits
    if hb == 0:
        g(f"s_and_b32 {R.skvh}, s2, 7")
        g(f"s_lshr_b32 {R.sp}, s2, 3")
    else:
        g(f"s_and_b32 {R.skvh}, s2, {(8 >> hb) - 1}")
        g(f"s_lshl_b32 {R.skvh}, {R.skvh}, {hb}")
        g(f"s_bfe_u32 {R.stmp}, s2, {3 | (hb << 16)}")
        g(f"s_or_b32 {R.skvh}, {R.skvh}, {R.stmp}")
        g(f"s_bfe_u32 {R.sp}, s2, {(3 - hb) | (hb << 16)}")
        g(f"s_lshl_b32 {R.sp}, {R.sp}, {5 - hb}")
        g(f"s_lshr_b32 {R.stmp}, s2, {3 + hb}")
        g(f"s_or_b32 {R.sp}, {R.sp}, {R.stmp}")
    if not opt.rot:
        g(f"s_mov_b32 {srot}, 0")
    elif hb == 0:
        g(f"s_and_b32 {srot}, {R.sp}, 15")
    else:
        g(f"s_lshl_b32 {srot}, {R.sp}, {hb - 1}")
        g(f"s_lshl_b32 {R.stmp}, {R.skvh}, {4 - hb}")
        g(f"s_add_u32 {srot}, {srot}, {R.stmp}")
        g(f"s_and_b32 {srot}, {srot}, 15")
    g(f"s_lshl_b32 {R.swoff}, {R.swave}, 12")
    g(f"v_and_b32 {tmp[0]}, 15, {lane}")
    g(f"v_lshlrev_b32 {tmp[0]}, 10, {tmp[0]}")
    g(f"v_lshrrev_b32 {tmp[1]}, 4, {lane}")
    g(f"v_lshl_add_u32 {xw}, {tmp[1]}, 4, {tmp[0]}")
    g(f"v_lshl_add_u32 {voffx}, {tmp[1]}, 3, {tmp[0]}")
    g(f"s_lshl_b32 {sxo}, {R.sp}, 16")
    g(f"s_lshl_b32 {R.stmp}, {R.swave}, 14")
    g(f"s_add_u32 {sxo}, {sxo}, {R.stmp}")
    g(f"s_lshl_b32 {R.stmp2}, {srot}, 6")
    if opt.stamps:
        g("v_mov_b32 v254, 0")
        g("v_mov_b32 v255, 0")
    g("s_waitcnt lgkmcnt(0)")
    srd(g, R.srdX, ptr[0:2], 2 << 20)
    stamp(k, R, "start")
    for j in range(16):
        g(f"s_or_b32 {R.stmp}, {sxo}, {R.stmp2}")
        g.vmem(f"buffer_load_dwordx4 v[{4*j}:{4*j+3}], {xw}, {R.srdX}, {R.stmp} offen", ("X", j))
        if j < 15:
            g(f"s_add_u32 {R.stmp2}, {R.stmp2}, 64")
            g(f"s_and_b32 {R.stmp2}, {R.stmp2}, 1023")
    stamp(k, R, "xissue")
    g(f"s_lshl_b32 {R.stmp}, {R.skvh}, 19")
    srd(g, R.srdWG, ptr[12:14], 512 * 3584)
    srd(g, R.srdWU, ptr[14:16], 512 * 3584)
    srd(g, R.srdWQ, ptr[6:8], 4 << 20)
    srd(g, R.srdK, ptr[2:4], 524288, R.stmp)
    srd(g, R.srdV, ptr[4:6], 524288, R.stmp)
    srd(g, R.srdWO, ptr[8:10], 524288, R.stmp)
    srd(g, R.srdWD, ptr2[0:2], 1792 * 1024)
    srd(g, R.srdOUT, ptr2[2:4], 2 << 20)
    srd(g, R.srdDBG, ptr2[4:6], 256)
    srd(g, R.srdWS, ptr2[6:8], 256 << 20)
    if opt.stamps:
        g(f"s_lshl_b32 {sst}, s2, 2")
        g(f"s_add_u32 {sst}, {sst}, {R.swave}")
        g(f"s_lshl_b32 {sst}, {sst}, 9")
        g(f"s_add_u32 {sst}, {sst}, {ST_BASE}")
    g(f"s_lshl_b32 {sfl}, {R.sp}, 2")
    g(f"s_add_u32 {sfl}, {sfl}, {R.swave}")
    g(f"s_lshl_b32 {sfl}, {sfl}, 3")
    g(f"s_add_u32 {sfl}, {sfl}, {R.skvh}")
    g(f"s_lshl_b32 {sfl}, {sfl}, 2")
    g(f"s_add_u32 {sfl}, {sfl}, {FL_BASE}")
    g(f"v_mov_b32 {vpoll}, 0")
    g("s_mov_b64 exec, 1")
    g.vmem(f"buffer_store_dword {vpoll}, off, {R.srdWS}, {sfl} sc1", ("FZ",))
    g("s_mov_b64 exec, -1")
    g(f"s_mov_b32 {sslow}, 0")
    GS = 32 * 3584
    g(f"s_lshl_b32 {sGb}, {R.skvh}, 9")
    g(f"s_lshl_b32 {R.stmp}, {R.swave}, 7")
    g(f"s_add_u32 {sGb}, {sGb}, {R.stmp}")
    g(f"s_add_u32 {sGl}, {sGb}, {16*GS}")
    g(f"s_mul_i32 {sG}, {srot}, {GS}")
    g(f"s_add_u32 {sG}, {sG}, {sGb}")
    g(f"s_lshl_b32 {sQ}, {R.skvh}, 10")
    g(f"s_lshl_b32 {R.stmp}, {R.swave}, 8")
    g(f"s_add_u32 {sQ}, {sQ}, {R.stmp}")
    g(f"s_lshl_b32 {R.stmp}, {srot}, 18")
    g(f"s_add_u32 {sQ}, {sQ}, {R.stmp}")
    emit(dma_voffs(g, voffG, lane, tmp, 3584, False))
    emit(dma_voffs(g, voffQ, lane, tmp, 8192, False))
    emit(tr_addrs(g, trN, lane, tmp, R.swoff, False))
    at.lane_consts(g, R, cfg, tmp, lane, R.swave)
    emit(tr_addrs(g, trS, lane, tmp, R.swoff, True))
    emit(dma_voffs(g, voffS, lane, tmp, 1024, True))
    g(f"v_lshlrev_b32 {voff16}, 4, {lane}")
    g(f"v_and_b32 {tmp[0]}, 3, {lane}")
    for j in range(1, 4):
        g(f"v_cmp_eq_u32 {msk[j]}, {j}, {tmp[0]}")
    g(f"v_bfe_u32 {tmp[0]}, {lane}, 2, 2")
    g(f"v_lshrrev_b32 {tmp[1]}, 4, {lane}")
    g(f"v_cmp_eq_u32 {msk[0]}, {tmp[0]}, {tmp[1]}")
    ones, D1, D2 = lt[0:4], lt[4:8], lt[8:12]
    for j in range(4):
        g(f"v_mov_b32 {ones[j]}, 0x3f803f80")
    g(f"s_lshl_b32 {R.stmp}, {R.swave}, 10")
    g(f"v_add_u32 {xw}, {R.stmp}, {voff16}")
    stamp(k, R, "consts")

    def kv_piece(which, tile, setup=True):
        u = (cfg.KBASE + cfg.kslot[tile % 4] * U if which == "K" else cfg.VBASE + cfg.vslot[tile % 4] * U) // U
        d = R.kdma if which == "K" else R.vdma
        return Piece((which, tile), u, R.srdK if which == "K" else R.srdV, [d[0], d[0], d[1], d[1]], R.stile,
                     [f"s_mov_b32 {R.stile}, {tile*U}"] if setup else [])

    def gq_piece(h):
        u = RING_GQ[h % 6]
        if h < 32:
            ks, m = divmod(h, 2)
            su = [f"s_add_u32 {sG}, {sG}, {GS}", f"s_cmp_lt_u32 {sG}, {sGl}", f"s_cselect_b32 {sG}, {sG}, {sGb}"] if (m == 0 and ks) else []
            return Piece(("W", h), u, R.srdWU if m else R.srdWG, voffG, sG, su)
        if h < 64:
            x = h & 1
            su = [] if h == 32 else [f"s_add_u32 {sQ}, {sQ}, 128"] if x else [f"s_add_u32 {sQ}, {sQ}, {32*8192-128}", f"s_and_b32 {sQ}, {sQ}, {(4<<20)-1}"]
            return Piece(("W", h), u, R.srdWQ, voffQ, sQ, su)
        p = kv_piece(*[("K", 0), ("K", 1), ("V", 0), ("V", 1), ("K", 2)][h - 64])
        assert p.unit == u
        return p

    nfill = [0]

    def fill_piece(i):
        j = nfill[0]
        nfill[0] += 1
        g(f"s_cmp_eq_u32 {R.skvh}, 7")
        g(f"s_cbranch_scc1 L_f7_{j}")
        vm0 = list(g.vm)
        for h in i:
            gq_piece(h).emit_now(g, R)
        g(f"s_branch L_fd_{j}")
        g.label(f"L_f7_{j}")
        vm1 = list(g.vm)
        g.vm = vm0
        for h in i:
            gq_piece(32 + h).emit_now(g, R)
        g.label(f"L_fd_{j}")
        g.vm = vm1

    UN = [64 + j for j in range(96)] + [192 + j for j in range(16)]

    def unpack(ks, dst):
        for d in range(4):
            g(f"v_lshlrev_b32 v{dst+2*d}, 16, v{4*ks+d}")
            g(f"v_and_b32 v{dst+2*d+1}, 0xffff0000, v{4*ks+d}")
    for ks in range(16):
        g.wait_vm(lambda t: t == ("X", ks))
        if ks == 0:
            stamp(k, R, "x0")
        X = Reg("v", 4 * ks, 4)
        g(f"{MF} {D1}, {ones}, {X}, {'0' if ks == 0 else D1}")
        g(f"{MF} {D2}, {X}, {X}, {'0' if ks == 0 else D2}")
        if ks < 14:
            unpack(ks, UN[8 * ks])
    stamp(k, R, "x15")
    fa = lambda ks: [h for h in range(6) if opt.fill_at[h] == ks]
    fill_piece(fa(0))
    if opt.codepf:
        g(f"s_getpc_b64 {R.st}")
        g.label("L_pc")
        g(f"s_and_b32 {R.stmp}, {R.sp}, 3")
        g(f"s_lshl_b32 {R.stmp}, {R.stmp}, 2")
        g(f"s_add_u32 {R.stmp}, {R.stmp}, {R.swave}")
        g(f"s_lshl_b32 {R.stmp}, {R.stmp}, 12")
        g(f"v_lshl_add_u32 {tm2[0]}, {lane}, 6, {R.stmp}")
        g(f"v_min_u32 {tm2[0]}, L_end-L_pc, {tm2[0]}")
        g.vmem(f"global_load_dword {tm2[1]}, {tm2[0]}, {R.st}", ("PF",))
    b_ = tmp[1]
    g(f"v_cndmask_b32 {tmp[2]}, {D2[0]}, {D2[1]}, {msk[1]}")
    g(f"v_cndmask_b32 {tmp[2]}, {tmp[2]}, {D2[2]}, {msk[2]}")
    g(f"v_cndmask_b32 {tmp[2]}, {tmp[2]}, {D2[3]}, {msk[3]}")
    g(f"v_cndmask_b32 {tmp[2]}, 0, {tmp[2]}, {msk[0]}")
    g(f"v_mul_f32 {b_}, {fbits(1/512)}, {D1[0]}")
    emit(reduce_G_ops([tmp[2]], [tmp[3]], "v_add_f32"))
    g(f"v_mul_f32 {tmp[3]}, {b_}, {b_}")
    g(f"s_mov_b32 {R.stmp}, {fbits(1/512)}")
    g(f"v_fma_f32 {tmp[2]}, {tmp[2]}, {R.stmp}, -{tmp[3]}")
    g(f"v_max_f32 {tmp[2]}, 0, {tmp[2]}")
    g(f"v_add_f32 {tmp[2]}, {fbits(1e-5)}, {tmp[2]}")
    g(f"v_rsq_f32 {tmp[2]}, {tmp[2]}")
    g("s_nop 0")
    AB = lt[0:4]
    g(f"v_mul_f32 {AB[0]}, {fbits(C_SCALE)}, {tmp[2]}")
    g(f"v_mul_f32 {AB[1]}, {fbits(C_SCALE)}, {tmp[2]}")
    g(f"v_mul_f32 {AB[2]}, {AB[0]}, -{b_}")
    g(f"v_mul_f32 {AB[3]}, {AB[0]}, -{b_}")
    for ks in range(16):
        if ks and fa(ks):
            fill_piece(fa(ks))
        src = UN[8 * ks] if ks < 14 else UN[8 * (ks - 14)]
        if ks >= 14:
            unpack(ks, src)
        for d in range(4):
            g(f"v_pk_fma_f32 v[{src+2*d}:{src+2*d+1}], v[{src+2*d}:{src+2*d+1}], {AB[0:2]}, {AB[2:4]}")
        for d in range(4):
            g(f"v_cvt_pk_bf16_f32 v{4*ks+d}, v{src+2*d}, v{src+2*d+1}")
        g.ds(f"ds_write_b128 {xw}, v[{4*ks}:{4*ks+3}] offset:{ks*4096}", ("W",))
        if len(g.lgkm) >= 12:
            g.wait_lgkm(lambda t: True)
    if fa(16):
        fill_piece(fa(16))
    g.wait_lgkm0()
    g("s_barrier")
    stamp(k, R, "ln")

    def bread(ks, qb):
        return (("B", ks, qb), f"ds_read_b128 {XB(ks, qb)}, {voff16} offset:{(ks*4+qb)*1024}")
    g(f"s_cmp_eq_u32 {R.skvh}, 7")
    g("s_cbranch_scc1 L_skipG")
    for qb in range(4):
        tg, txt = bread(0, qb)
        g.ds(txt, tg)

    def g_breads(h):
        ks, m = divmod(h, 2)
        return [bread(ks + 1, qb) for qb in range(4)] if (m == 1 and ks + 1 < 16) else []
    gemm(k, R, 32, lambda h: RING_GQ[h % 6], lambda h: ("W", h), trN, False,
         lambda h, nb, qb: (ACC(4 * (h & 1) + nb, qb), h < 2), lambda h, qb: (XB(h >> 1, qb), ("B", h >> 1, qb)),
         lambda h: gq_piece(h + 5) if h >= 1 else None, AF, b_reads=g_breads)
    stamp(k, R, "gateup")
    g(f"s_mul_i32 {sH}, {R.sp}, {56*4096}")
    g(f"s_lshl_b32 {R.stmp}, {R.skvh}, 15")
    g(f"s_add_u32 {sH}, {sH}, {R.stmp}")
    g(f"s_lshl_b32 {R.stmp}, {R.swave}, 13")
    g(f"s_add_u32 {sH}, {sH}, {R.stmp}")
    assert H_BASE == 0
    gq_piece(37).emit_now(g, R)
    for u in range(2):
        for qb in range(4):
            for b in range(2):
                G_, U_ = ACC(2 * u + b, qb), ACC(4 + 2 * u + b, qb)
                g(f"v_pk_mul_f32 {G_[0:2]}, {G_[0:2]}, {U_[0:2]}")
                g(f"v_pk_mul_f32 {G_[2:4]}, {G_[2:4]}, {U_[2:4]}")
            dst = ACC(4 + 2 * u, qb)
            for b in range(2):
                G_ = ACC(2 * u + b, qb)
                g(f"v_cvt_pk_bf16_f32 {dst[2*b]}, {G_[0]}, {G_[1]}")
                g(f"v_cvt_pk_bf16_f32 {dst[2*b+1]}, {G_[2]}, {G_[3]}")
            off = f" offset:{qb*1024}" if qb else ""
            g.vmem(f"buffer_store_dwordx4 {dst}, {voff16}, {R.srdWS}, {sH} offen{off} sc1", ("HS",))
        if u == 0:
            g(f"s_add_u32 {sH}, {sH}, 4096")
    g("s_branch L_Q")
    vm_main = list(g.vm)
    g.label("L_skipG")
    g.lgkm = []
    for ks in range(16):
        for qb in range(4):
            tg, txt = bread(ks, qb)
            g.ds(txt, tg)
        if ks % 2 == 1:
            g.wait_lgkm0()
    if opt.stamps:
        k.nst -= 1
        stamp(k, R, "gateup7")
        k.names.pop()
    g("s_waitcnt vmcnt(0)")
    g.label("L_Q")
    g.vm = vm_main
    g.lgkm = []
    stamp(k, R, "hstore")
    gemm(k, R, 32, lambda h: RING_GQ[(32 + h) % 6], lambda h: ("W", 32 + h), trN, False,
         lambda h, nb, qb: (ACC(4 * (h & 1) + nb, qb), h < 2), lambda h, qb: (XB(h >> 1, qb), None),
         lambda h: gq_piece(32 + h + 5) if h >= 1 else None, AF)
    stamp(k, R, "qproj")
    g("s_nop 3")
    for kk in range(4):
        for qb in range(4):
            A_, B_ = ACC(2 * kk, qb), ACC(2 * kk + 1, qb)
            g(f"v_cvt_pk_bf16_f32 {A_[0]}, {A_[0]}, {A_[1]}")
            g(f"v_cvt_pk_bf16_f32 {A_[1]}, {A_[2]}, {A_[3]}")
            g(f"v_cvt_pk_bf16_f32 {B_[0]}, {B_[0]}, {B_[1]}")
            g(f"v_cvt_pk_bf16_f32 {B_[1]}, {B_[2]}, {B_[3]}")
        for sw in ("v_permlane32_swap_b32", "v_permlane16_swap_b32"):
            for qb in range(4):
                A_, B_ = ACC(2 * kk, qb), ACC(2 * kk + 1, qb)
                g(f"{sw} {A_[0]}, {B_[0]}")
                g(f"{sw} {A_[1]}, {B_[1]}")
        for qb in range(4):
            A_, B_ = ACC(2 * kk, qb), ACC(2 * kk + 1, qb)
            Q = R.Q[kk][qb]
            g(f"v_accvgpr_write_b32 {Q[0]}, {A_[0]}")
            g(f"v_accvgpr_write_b32 {Q[1]}, {A_[1]}")
            g(f"v_accvgpr_write_b32 {Q[2]}, {B_[0]}")
            g(f"v_accvgpr_write_b32 {Q[3]}, {B_[1]}")
    vm_kv = [t for t in g.vm if t[0] in ("K", "V")]
    g("s_waitcnt vmcnt(0)")
    g("s_barrier")
    g(f"s_cmp_lg_u32 {R.swave}, 0")
    g("s_cbranch_scc1 L_nosig")
    g(f"s_lshl_b32 {R.stmp}, {R.sp}, 2")
    g(f"v_mov_b32 {vpoll}, 1")
    g("s_mov_b64 exec, 1")
    g(f"buffer_atomic_add {vpoll}, off, {R.srdDBG}, {R.stmp} sc1")
    g("s_mov_b64 exec, -1")
    g.label("L_nosig")
    g.vm = vm_kv
    stamp(k, R, "qepi")
    g.label("L_attn")
    kv_piece("V", 2).emit_now(g, R)
    g(f"s_mov_b32 {R.stile}, {3*U}")
    for n in range(-8, 0):
        for op in at.read_ops(g, R, cfg, n):
            op()
    for qb in range(4):
        g(f"v_mov_b32 {R.l[qb]}, 0")
    for w in range(32, 64):
        n, txt = at.mfma_desc(R, cfg, -1, w)
        g.wait_lgkm(lambda t: t[1] <= n)
        for qb in range(4):
            txt = txt.replace(f", {R.negm[qb]}", ", 0")
        g(txt)
    for n in range(8, 8 + cfg.D):
        for op in at.read_ops(g, R, cfg, n):
            op()
    mx = [tmp[j] for j in range(4)]
    mt = [tm2[j] for j in range(4)]
    g(f"s_cmp_lg_u32 {sslow}, 0")
    g("s_cbranch_scc1 L_havemax")
    for qb in range(4):
        Sx = R.S[0][qb]
        g(f"v_max3_f32 {mx[qb]}, {Sx[0]}, {Sx[1]}, {Sx[2]}")
        g(f"v_max3_f32 {mx[qb]}, {mx[qb]}, {Sx[3]}, {Sx[4]}")
        g(f"v_max3_f32 {mx[qb]}, {mx[qb]}, {Sx[5]}, {Sx[6]}")
        g(f"v_max_f32 {mx[qb]}, {mx[qb]}, {Sx[7]}")
    emit(reduce_G_ops(mx, mt, "v_max_f32"))
    g.label("L_havemax")
    for qb in range(4):
        for j in range(4):
            g(f"v_sub_f32 {R.negm[qb][j]}, 0, {mx[qb]}")
        for j in range(8):
            g(f"v_sub_f32 {R.S[0][qb][j]}, {R.S[0][qb][j]}, {mx[qb]}")
    for grp in range(16 + cfg.G0 // 4, 16):
        at.emit_group(g, R, cfg, -1, grp, mf=False, reads=False)
    for grp in range(8):
        at.emit_group(g, R, cfg, 0, grp, mf=False, reads=False)
    at.emit_step(g, R, cfg, 0, groups=range(8, 16))
    g(f"s_mov_b32 {R.sloop}, 0")
    at.emit_step(g, R, cfg, 1, first_pv=True)
    st_l, st_v = list(g.lgkm), list(g.vm)
    stamp(k, R, "attn0")
    g.lgkm = list(st_l)
    g.raw(".p2align 3")
    g.label("L_loop")
    for i in range(2, 10):
        at.emit_step(g, R, cfg, i)
    sh = lambda q, d: [(t[0], t[1] - d) for t in q]
    assert sh(g.lgkm, 128) == st_l, (g.lgkm, st_l)
    assert sh(g.vm, 4) == st_v, (g.vm, st_v)
    g(f"s_add_u32 {R.sloop}, {R.sloop}, 1")
    g(f"s_cmp_lt_u32 {R.sloop}, 7")
    g("s_cbranch_scc1 L_loop")
    g.lgkm = [(t[0], t[1] + 128 * 6) for t in g.lgkm]
    g.vm = [(t[0], t[1] + 4 * 6) for t in g.vm]
    g(f"s_lshl_b32 {R.stmp}, {R.sp}, 2")
    g.vmem(f"buffer_load_dword {vpoll}, off, {R.srdDBG}, {R.stmp} sc1", ("POLL",))
    r14 = R.stmp2
    sc = [f"s_lshl_b32 {sO}, {srot}, 15", f"s_lshl_b32 {R.stmp}, {R.swave}, 8", f"s_add_u32 {sO}, {sO}, {R.stmp}",
          f"s_cmp_ge_u32 {srot}, 14", f"s_cselect_b32 {r14}, 14, 0", f"s_sub_u32 {r14}, {srot}, {r14}",
          f"s_mul_i32 {sDb}, {R.swave}, {14*32768}", f"s_lshl_b32 {R.stmp}, {R.skvh}, 7", f"s_add_u32 {sDb}, {sDb}, {R.stmp}",
          f"s_add_u32 {sDl}, {sDb}, {14*32768}", f"s_lshl_b32 {sD}, {r14}, 15", f"s_add_u32 {sD}, {sD}, {sDb}",
          f"s_mul_i32 {sHb}, {R.sp}, {56*4096}", f"s_mul_i32 {R.stmp}, {R.swave}, {14*4096}", f"s_add_u32 {sHb}, {sHb}, {R.stmp}",
          f"s_add_u32 {sHl}, {sHb}, {14*4096}", f"s_lshl_b32 {sH}, {r14}, 12", f"s_add_u32 {sH}, {sH}, {sHb}"]

    def od_piece(h):
        u = RING_OD[h % 6]
        if h < 32:
            su = [] if h == 0 else [f"s_add_u32 {sO}, {sO}, 128"] if h & 1 else [f"s_add_u32 {sO}, {sO}, {32*1024-128}", f"s_and_b32 {sO}, {sO}, {(1<<19)-1}"]
            return Piece(("WO", h), u, R.srdWO, voffS, sO, su)
        j = h - 32
        if j >= 14:
            return None
        su = [f"s_add_u32 {sD}, {sD}, 32768", f"s_cmp_lt_u32 {sD}, {sDl}", f"s_cselect_b32 {sD}, {sD}, {sDb}"] if j else []
        return Piece(("WD", j), u, R.srdWD, voffS, sD, su)

    vh = [vhoff, tm2[0], tm2[1], tm2[2]]

    def h_alt(j, qb):
        su = clo([f"s_add_u32 {sH}, {sH}, 4096", f"s_cmp_lt_u32 {sH}, {sHl}", f"s_cselect_b32 {sH}, {sH}, {sHb}"]) if (qb == 0 and j) else []
        return (su, lambda: g.vmem(f"buffer_load_dwordx4 {HB(j, qb)}, {vh[qb]}, {R.srdWS}, {sH} offen sc1", ("H", j)))

    def poll_h():
        g.wait_vm(lambda t: t == ("POLL",))
        g(f"v_readfirstlane_b32 {R.stmp}, {vpoll}")
        g("s_nop 0")
        g(f"s_cmp_eq_u32 {R.stmp}, 8")
        g("s_cbranch_scc0 L_spin_h")
        g.label("L_h_ok")
    xt = {}
    for j, s_ in enumerate(sc):
        xt.setdefault((j // 2, 2 * (j % 2)), []).append(lambda s_=s_: g(s_))
    hv = []
    for qb in range(4):
        hv += [f"s_add_u32 {R.stmp}, {R.swave}, {qb}", f"s_and_b32 {R.stmp}, {R.stmp}, 3", f"s_lshl_b32 {R.stmp}, {R.stmp}, 10",
               f"v_add_u32 {vh[qb]}, {R.stmp}, {voff16}"]
    xt.setdefault((11, 0), []).extend(clo(hv[0:4]))
    xt.setdefault((12, 0), []).extend(clo(hv[4:8]))
    xt.setdefault((13, 0), []).extend(clo(hv[8:12]))
    xt.setdefault((14, 0), []).extend(clo(hv[12:16]))
    xt.setdefault((15, 0), []).append(poll_h)
    at.emit_step(g, R, cfg, 58, xtra=xt)
    hs = [(j, qb) for j in range(8) for qb in range(4)]
    at.emit_step(g, R, cfg, 59, alt=od_piece(0).alt(g, R) + od_piece(1).alt(g, R) + [h_alt(*x) for x in hs[0:4]])
    at.emit_step(g, R, cfg, 60, alt=[h_alt(*x) for x in hs[4:16]])
    at.emit_step(g, R, cfg, 61, alt=od_piece(2).alt(g, R) + od_piece(3).alt(g, R) + [h_alt(*x) for x in hs[16:20]])
    at.emit_step(g, R, cfg, 62, alt=[h_alt(*x) for x in hs[20:32]])
    at.emit_step(g, R, cfg, 63)
    RL = [R.negm[qb][0:2] for qb in range(4)]
    lt4 = [R.negm[qb][2] for qb in range(4)]
    vv = reduce_G_ops(R.l, lt4, "v_add_f32")
    vv += [f"v_add_f32 {tmp[1]}, {R.l[0]}, {R.l[1]}", f"v_add_f32 {tmp[2]}, {R.l[2]}, {R.l[3]}", f"v_add_f32 {tmp[1]}, {tmp[1]}, {tmp[2]}"]
    vv += [f"v_cmp_nge_f32 vcc, {fbits(L_LIMIT if not opt.force_slow else -1.0)}, {tmp[1]}"]
    vv += [f"v_rcp_f32 {RL[qb][0]}, {R.l[qb]}" for qb in range(4)]
    vv += [f"s_cmp_lg_u64 vcc, 0", f"s_cselect_b32 {R.stmp}, 1, 0", f"s_andn2_b32 {R.stmp}, {R.stmp}, {sslow}", f"v_mov_b32 {tmp[1]}, {R.stmp}"]
    vv += [f"v_mov_b32 {RL[qb][1]}, {RL[qb][0]}" for qb in range(4)]
    vv += [f"s_lshl_b32 {R.stmp}, {R.swave}, 2", f"s_add_u32 {R.stmp}, {R.stmp}, {6*U}", f"v_lshl_add_u32 {tmp[0]}, {lane}, 12, {R.stmp}"]
    vcl = clo(vv)
    at.emit_step(g, R, cfg, 64, groups=range(8), valu=vcl)
    for f in vcl:
        f()
    g("s_mov_b64 exec, 15")
    g.ds(f"ds_write_b32 {tmp[0]}, {tmp[1]}", ("W",))
    g("s_mov_b64 exec, -1")
    g(f"s_add_u32 {R.stmp}, {R.swoff}, {6*U}")
    g(f"v_mov_b32 {tmp[0]}, {R.stmp}")
    g.wait_lgkm0()
    g("s_barrier")
    stamp(k, R, "attn")
    g.ds(f"ds_read_b128 {R.S[0][0][0:4]}, {tmp[0]}", ("ST",))

    def o_block(u, qb):
        for b in range(2):
            O = R.O[2 * u + b][qb]
            g(f"v_pk_mul_f32 {O[0:2]}, {O[0:2]}, {RL[qb]}")
            g(f"v_pk_mul_f32 {O[2:4]}, {O[2:4]}, {RL[qb]}")
        O0, O1 = R.O[2 * u][qb], R.O[2 * u + 1][qb]
        g(f"v_cvt_pk_bf16_f32 {O0[0]}, {O0[0]}, {O0[1]}")
        g(f"v_cvt_pk_bf16_f32 {O0[1]}, {O0[2]}, {O0[3]}")
        g(f"v_cvt_pk_bf16_f32 {O0[2]}, {O1[0]}, {O1[1]}")
        g(f"v_cvt_pk_bf16_f32 {O0[3]}, {O1[2]}, {O1[3]}")
    ST = R.S[0][0]
    o_block(0, 0)
    o_block(0, 1)
    g.wait_lgkm0()
    g(f"v_or_b32 {ST[0]}, {ST[0]}, {ST[1]}")
    g(f"v_or3_b32 {ST[0]}, {ST[0]}, {ST[2]}, {ST[3]}")
    g(f"s_lshl_b32 {R.stmp2}, {R.swave}, 2")
    g(f"v_readfirstlane_b32 {R.stmp}, {ST[0]}")
    g(f"s_sub_u32 {R.stmp2}, {R.stmp2}, {srot}")
    g(f"s_cmp_lg_u32 {R.stmp}, 0")
    g("s_cbranch_scc1 L_slow")
    od_piece(4).emit_now(g, R)
    od_piece(5).emit_now(g, R)
    hrest = [h_alt(j, qb) for j in range(8, 14) for qb in range(4)]
    for u in range(4):
        g(f"s_and_b32 {R.stmp}, {R.stmp2}, 15")
        g(f"s_lshl_b32 {R.stmp}, {R.stmp}, 12")
        g(f"v_add_u32 {tmp[u]}, {R.stmp}, {voff16}")
        g(f"s_add_u32 {R.stmp2}, {R.stmp2}, 1")
        for qb in range(4):
            if (u, qb) not in ((0, 0), (0, 1)):
                o_block(u, qb)
            g.ds(f"ds_write_b128 {tmp[u]}, {R.O[2*u][qb]} offset:{qb*1024}", ("W",))
            for _ in range(2):
                if hrest:
                    su, op = hrest.pop(0)
                    for f in su:
                        f()
                    op()
        if u == 2:
            g.wait_lgkm0()
    xres = Reg("v", 224, 8)
    g(f"s_lshl_b32 {R.stmp}, {R.skvh}, 7")
    g(f"s_add_u32 {sxo}, {sxo}, {R.stmp}")
    g.wait_lgkm0()
    for nb in range(4):
        g.vmem(f"buffer_load_dwordx2 {xres[2*nb:2*nb+2]}, {voffx}, {R.srdX}, {sxo} offen offset:{nb*32}", ("X", 99))
    g("s_barrier")
    stamp(k, R, "oepi")

    def obread(ks, qb):
        return (("B", ks, qb), f"ds_read_b128 {BF[((ks&1)*4+qb)*4:((ks&1)*4+qb)*4+4]}, {voff16} offset:{(ks*4+qb)*1024}")
    for qb in range(4):
        tg, txt = obread(0, qb)
        g.ds(txt, tg)

    def o_breads(h):
        ks, x = divmod(h, 2)
        return [obread(ks + 1, qb) for qb in range(4)] if (x == 1 and ks + 1 < 16) else []
    gemm(k, R, 32, lambda h: RING_OD[h % 6], lambda h: ("WO", h), trS, True,
         lambda h, nb, qb: (ACC(4 * (h & 1) + nb, qb), h < 2),
         lambda h, qb: (BF[(((h >> 1) & 1) * 4 + qb) * 4:(((h >> 1) & 1) * 4 + qb) * 4 + 4], ("B", h >> 1, qb)),
         lambda h: od_piece(h + 5) if h >= 1 else None, AF, b_reads=o_breads)
    stamp(k, R, "oproj")
    g(f"s_lshl_b32 {sSP}, {R.sp}, 3")
    g(f"s_lshl_b32 {R.stmp}, {R.swave}, 1")
    g(f"s_add_u32 {sSP}, {sSP}, {R.stmp}")
    g(f"s_lshl_b32 {sSP}, {sSP}, 3")
    g(f"s_add_u32 {sSP}, {sSP}, {R.skvh}")
    g(f"s_lshl_b32 {sSP}, {sSP}, 13")
    g(f"s_add_u32 {sSP}, {sSP}, {SP_BASE}")
    od_piece(37).emit_now(g, R)
    fill = []
    for s in range(2):
        for qb in range(4):
            for u in range(2):
                A_, B_ = ACC(4 * s + 2 * u, qb), ACC(4 * s + 2 * u + 1, qb)
                fill += clo([f"v_cvt_pk_bf16_f32 {A_[0]}, {A_[0]}, {A_[1]}", f"v_cvt_pk_bf16_f32 {A_[1]}, {A_[2]}, {A_[3]}",
                             f"v_cvt_pk_bf16_f32 {A_[2]}, {B_[0]}, {B_[1]}", f"v_cvt_pk_bf16_f32 {A_[3]}, {B_[2]}, {B_[3]}"])
                o = ((qb & 1) * 2 + u) * 1024
                off = f" offset:{o}" if o else ""
                step = 4096 if (qb == 1 and u == 1) else 65536 - 4096 if (qb == 3 and u == 1 and s == 0) else 0

                def st(A_=A_, off=off, step=step):
                    g.vmem(f"buffer_store_dwordx4 {A_}, {voff16}, {R.srdWS}, {sSP} offen{off} sc1", ("SS",))
                    if step:
                        g(f"s_add_u32 {sSP}, {sSP}, {step}")
                    return 2
                fill.append(st)
    sp = Reg("v", 0, 64)

    def set_flag():
        assert not fill
        stamp(k, R, "preflag")
        g.wait_vm0()
        stamp(k, R, "acked")
        g(f"v_mov_b32 {vpoll}, 1")
        g("s_mov_b64 exec, 1")
        g.vmem(f"buffer_store_dword {vpoll}, off, {R.srdWS}, {sfl} sc1", ("FL",))
        g("s_mov_b64 exec, -1")
        g("s_barrier")
        g(f"s_lshl_b32 {sfl}, {R.sp}, 2")
        g(f"s_lshr_b32 {R.stmp}, {R.skvh}, 1")
        g(f"s_add_u32 {sfl}, {sfl}, {R.stmp}")
        g(f"s_lshl_b32 {sfl}, {sfl}, 5")
        g(f"s_add_u32 {sfl}, {sfl}, {FL_BASE}")
        g(f"v_and_b32 {tm2[0]}, 7, {lane}")
        g(f"v_lshlrev_b32 {tm2[0]}, 2, {tm2[0]}")
        g(f"s_lshl_b32 {sSP}, {R.sp}, 3")
        g(f"s_add_u32 {sSP}, {sSP}, {R.skvh}")
        g(f"s_lshl_b32 {sSP}, {sSP}, 16")
        g(f"s_lshl_b32 {R.stmp}, {R.swave}, 11")
        g(f"s_add_u32 {sSP}, {sSP}, {R.stmp}")
        g(f"s_add_u32 {sSP}, {sSP}, {SP_BASE}")

    def issue_poll():
        g.vmem(f"buffer_load_dword {vpoll}, {tm2[0]}, {R.srdWS}, {sfl} offen sc1", ("POLL",))

    def extra(h):
        ex = {}
        if h == opt.flag_piece:
            ex[(0, 3)] = [set_flag]
        if h in (3, 6) and opt.stamps:
            ex[(0, 1)] = [lambda: stamp(k, R, f"d{h}")]
        if h == opt.poll_piece:
            ex[(0, 2)] = [issue_poll]
        return ex
    g.wait_vm(lambda t: t[0] == "H")
    gemm(k, R, 14, lambda h: RING_OD[(32 + h) % 6], lambda h: ("WD", h), trS, True,
         lambda h, nb, qb: (DACC(nb, qb), h == 0), lambda h, qb: (HB(h, qb), None),
         lambda h: od_piece(32 + h + 5) if h >= 1 else None, AF, extra=extra, fill=fill)
    stamp(k, R, "down")
    g.wait_vm(lambda t: t == ("POLL",))
    g(f"v_cmp_ne_u32 vcc, 1, {vpoll}")
    g("s_nop 0")
    g(f"s_cmp_lg_u64 vcc, 0")
    g(f"s_cselect_b32 {spin}, 1, 0")
    g("s_cbranch_scc1 L_notyet")

    def sp_loads():
        for src in range(8):
            for u in range(2):
                off = f" offset:{u*1024}" if u else ""
                g.vmem(f"buffer_load_dwordx4 {sp[src*8+u*4:src*8+u*4+4]}, {voff16}, {R.srdWS}, {sSP} offen{off} sc1", ("SP", src))
            if src < 7:
                g(f"s_add_u32 {sSP}, {sSP}, 8192")
    sp_loads()
    g.label("L_notyet")
    stamp(k, R, "polled")
    for qb in range(1, 4):
        g(f"s_add_u32 {R.stmp}, {R.swave}, {qb}")
        g(f"s_and_b32 {R.stmp}, {R.stmp}, 3")
        g(f"s_lshl_b32 {R.stmp}, {R.stmp}, 14")
        g(f"v_add_u32 {tm2[qb]}, {R.stmp}, {voff16}")
        for nb in range(4):
            g.ds(f"ds_write_b128 {tm2[qb]}, {DACC(nb, qb)} offset:{(qb*4+nb)*1024}", ("W",))
    g(f"v_lshl_add_u32 {tm2[1]}, {R.swoff}, 2, {voff16}")
    g.wait_lgkm0()
    g("s_barrier")
    for qb in range(1, 4):
        for nb in range(4):
            g.ds(f"ds_read_b128 {DACC(nb, qb)}, {tm2[1]} offset:{(qb*4+nb)*1024}", ("R", qb))
    Bv = [Reg("v", 160 + j) for j in range(16)]
    E = [Reg("v", 176 + j) for j in range(16)]
    T = [Reg("v", 128 + j) for j in range(32)]
    g(f"s_mov_b32 {R.stmp}, {fbits(1.0 / (C_SCALE * C_SCALE))}")
    g(f"s_mov_b32 {R.stmp2}, {fbits(-1.4426950408889634 / (C_SCALE * C_SCALE))}")
    for qb in range(1, 4):
        g.wait_lgkm(lambda t: t[1] <= qb)
        for j in range(0, 16, 2):
            g(f"v_pk_add_f32 v[{160+j}:{161+j}], v[{160+j}:{161+j}], v[{160+16*qb+j}:{161+16*qb+j}]")
    for j in range(16):
        g(f"v_mul_f32 {E[j]}, {R.stmp2}, {Bv[j]}")
    for j in range(16):
        g(f"v_exp_f32 {E[j]}, {E[j]}")
    for j in range(16):
        g(f"v_mul_f32 {Bv[j]}, {R.stmp}, {Bv[j]}")
    for j in range(16):
        g(f"v_add_f32 {E[j]}, 1.0, {E[j]}")
    for j in range(16):
        g(f"v_rcp_f32 {E[j]}, {E[j]}")
    for d in range(8):
        g(f"v_lshlrev_b32 {T[2*d]}, 16, {xres[d]}")
        g(f"v_and_b32 {T[2*d+1]}, 0xffff0000, {xres[d]}")
    for j in range(16):
        g(f"v_mul_f32 {Bv[j]}, {Bv[j]}, {E[j]}")
    stamp(k, R, "silu")
    g(f"s_cmp_lg_u32 {spin}, 0")
    g("s_cbranch_scc1 L_spin_s")
    g.label("L_s_ok")
    stamp(k, R, "sok")
    for src in range(8):
        g.wait_vm(lambda t: t == ("SP", src))
        for d in range(8):
            r = sp[src * 8 + d]
            if src == 0:
                g(f"v_lshlrev_b32 {E[2*d]}, 16, {r}")
                g(f"v_and_b32 {E[2*d+1]}, 0xffff0000, {r}")
            else:
                g(f"v_lshlrev_b32 {T[16+2*d]}, 16, {r}")
                g(f"v_and_b32 {T[17+2*d]}, 0xffff0000, {r}")
                g(f"v_pk_add_f32 v[{176+2*d}:{177+2*d}], v[{176+2*d}:{177+2*d}], v[{144+2*d}:{145+2*d}]")
    for nb in range(4):
        for j in range(4 * nb, 4 * nb + 4):
            g(f"v_fma_f32 {Bv[j]}, {Bv[j]}, {E[j]}, {T[j]}")
        g(f"v_cvt_pk_bf16_f32 {T[4*nb]}, {Bv[4*nb]}, {Bv[4*nb+1]}")
        g(f"v_cvt_pk_bf16_f32 {T[4*nb+1]}, {Bv[4*nb+2]}, {Bv[4*nb+3]}")
        g.vmem(f"buffer_store_dwordx2 v[{128+4*nb}:{129+4*nb}], {voffx}, {R.srdOUT}, {sxo} offen offset:{nb*32}", ("OUT",))
    stamp(k, R, "final")
    if opt.stamps:
        g(f"v_lshlrev_b32 {tm2[0]}, 3, {lane}")
        g(f"s_mov_b64 exec, 0xffffffff")
        g(f"buffer_store_dwordx2 v[254:255], {tm2[0]}, {R.srdWS}, {sst} offen")
    g("s_endpgm")

    g.label("L_spin_h")
    g(f"s_mov_b32 {spin}, 0")
    g(f"s_lshl_b32 {R.stmp2}, {R.sp}, 2")
    g.label("L_spin_h1")
    g(f"buffer_load_dword {vpoll}, off, {R.srdDBG}, {R.stmp2} sc1")
    g(f"s_add_u32 {spin}, {spin}, 1")
    g("s_waitcnt vmcnt(0)")
    g(f"v_readfirstlane_b32 {R.stmp}, {vpoll}")
    g("s_nop 0")
    g(f"s_cmp_eq_u32 {R.stmp}, 8")
    g("s_cbranch_scc1 L_h_ok")
    g(f"s_cmp_lt_u32 {spin}, {SPIN}")
    g("s_cbranch_scc1 L_spin_h1")
    g("s_branch L_h_ok")
    g.label("L_spin_s")
    g(f"buffer_load_dword {vpoll}, {tm2[0]}, {R.srdWS}, {sfl} offen sc1")
    g(f"s_add_u32 {spin}, {spin}, 1")
    g("s_waitcnt vmcnt(0)")
    g(f"v_cmp_ne_u32 vcc, 1, {vpoll}")
    g("s_nop 0")
    g(f"s_cmp_eq_u64 vcc, 0")
    g("s_cbranch_scc1 L_spin_s1")
    g(f"s_cmp_lt_u32 {spin}, {SPIN}")
    g("s_cbranch_scc1 L_spin_s")
    g.label("L_spin_s1")
    g.vm = []
    sp_loads()
    g("s_branch L_s_ok")
    g.label("L_slow")
    g.vm = []
    g.lgkm = []
    g(f"s_mov_b32 {sslow}, 1")
    g("s_waitcnt vmcnt(0)")
    for qb in range(4):
        g(f"v_mov_b32 {mx[qb]}, 0xff800000")
    g(f"s_mov_b32 {R.stile}, 0")
    g.label("L_slow1")
    g("s_barrier")
    kv_piece("K", 0, setup=False).emit_now(g, R)
    g.wait_vm0()
    g("s_barrier")
    for half in range(2):
        for n in range(8):
            for op in at.read_ops(g, R, cfg, 16 * (half - 1) + 8 + n):
                op()
        g.wait_lgkm0()
        for w in range(32, 64):
            n, txt = at.mfma_desc(R, cfg, half - 1, w)
            for qb in range(4):
                txt = txt.replace(f", {R.negm[qb]}", ", 0")
            g(txt)
        g("s_nop 7")
        for qb in range(4):
            Sx = R.S[half][qb]
            for j in range(0, 8, 2):
                g(f"v_max3_f32 {mx[qb]}, {mx[qb]}, {Sx[j]}, {Sx[j+1]}")
    g(f"s_add_u32 {R.stile}, {R.stile}, {U}")
    g(f"s_cmp_lt_u32 {R.stile}, {32*U}")
    g("s_cbranch_scc1 L_slow1")
    emit(reduce_G_ops(mx, mt, "v_max_f32"))
    g("s_barrier")
    for w_, t_ in (("K", 0), ("K", 1), ("V", 0), ("V", 1), ("K", 2)):
        kv_piece(w_, t_).emit_now(g, R)
    g("s_waitcnt vmcnt(0)")
    g("s_barrier")
    g("s_branch L_attn")
    g.label("L_end")
    g("s_endpgm")
    return k


def gen(opt):
    header = open(f"cdna_kernels/{KN}.s.ref").read().split("; Override launch")[0]
    k = gen_kernel(opt)
    body = k.g.lines
    bad = check_hazards(body)
    lp = body[body.index("L_loop:"):]
    lp = lp[:[j for j, l in enumerate(lp) if "s_cbranch_scc1 L_loop" in l][0]]
    bad += check_hazards(lp + lp)
    n1 = sum(1 for l in body if l.startswith("    ") and not l.strip().startswith(";"))
    print("instrs", n1, "hazards", len(bad))
    asm = header
    asm += "; @launch grid=(256,1,1) block=(256,1,1) lds=163840\n"
    asm += '.amdgcn_target "amdgcn-amd-amdhsa--gfx950"\n'
    asm += kernel_header(KN + "_kernel") + k.g.text()
    asm += kernel_footer(KN + "_kernel", 512, 102, 256)
    return asm, k.names


def mk(**kw):
    o = Opt()
    for a, v in kw.items():
        assert hasattr(o, a), a
        setattr(o, a, v)
    return o


if __name__ == "__main__":
    import json
    variants = eval(sys.argv[1]) if len(sys.argv) > 1 else {"v2": {}, "v2_st": dict(stamps=True)}
    for name, kw in variants.items():
        o = mk(**kw)
        asm, n1 = gen(o)
        build(asm, f"dev/{name}", KN + "_kernel")
        if o.stamps:
            json.dump([n1], open(f"dev/{name}.json", "w"))
    print(" ".join(variants))
    print(", ".join(f'"dev/{n}.co", "dev/{n}.s"' + (f', "dev/{n}.json"' if variants[n].get("stamps") else "") for n in variants))
```

```python
import sys, math, struct
from asmlib import *
import attn17 as at
from attn16 import MF
from gen2 import fbits, srd, stamp, tr_addrs, dma_voffs, reduce_G_ops, K, KN, C_SCALE

U = 16384
H_BASE = 0
H_DUMMY = 7 << 20
SP_BASE = 8 << 20
FL_BASE = 32 << 20
ST_BASE = 64 << 20
RING_GQ = [4, 5, 6, 7, 8, 9]
RING_OD = [8, 4, 9, 5, 6, 7]
L_LIMIT = 2.0 ** 40
SPIN = 1 << 17


DOC = '''; ---------------------------------------------------------------------------------------------------------------
; ---------------------------------------------------------------------------------------------------------------
'''


class Opt:
    stamps = False
    lead = 2
    codepf = True
    hbits = 1
    nfill = 3
    fill_pos = (0,) * 8 + (9, 11, 13, 15) + (16,) * 8
    touch = True
    idle_pf = True
    code0 = 1
    pf_early = False
    h63 = 8
    peel = 1
    st1_group = 65
    st1_step = 6
    st2_step = 1
    st_late = 0
    sp_in = True
    wr_delay = True
    hybrid = True
    gq_stamps = ()
    od_stamps = ()
    w_mod = ''
    out_x4 = True
    out_mod = ' sc1'
    b_single = False
    fill_stats = (1, 3, 5, 7, 9, 11, 13, 15)
    hs_late = True
    h_lds_j = 4
    h_plan = (1, 4, 2, 4, 2, 3, 1, 8, 4, 8, 4, 4)
    tail_stamps = False
    mfma_sum = True
    idle_more = ()
    idle_wo = 0
    diag_nowait = False
    diag_st = ' sc1'
    sleep = 0
    flag_at = 0
    d_fifo = False
    flag_group = 150
    poll_group = 164
    look_group = 173
    sp_step = 2
    catch = (5, 6)
    soft = True
    hoist = True
    trim = True
    sum_mid = 8
    sp_n = 10
    ln_lead = True
    last_q = False
    align = 3
    tlb = False
    tlb0 = 0
    stouch = 0
    tlb_sh = 20
    tlb_sh2 = 20
    tlb_first = False
    poll2 = True
    sum_early = 0
    x_group = 149
    o_catch = 4
    force_slow = False
    ticket = False
    echo = None
    dbgstamps = None
    attn = dict(BAR=10)


class Item:
    def __init__(self, setup, fn, late=False):
        self.setup, self.fn, self.late = list(setup), fn, late


class Piece:
    mod = ""

    def __init__(self, tag, unit, srd, voff, soff_reg, soff_setup):
        self.tag, self.unit, self.srd, self.voff, self.soff_reg = tag, unit, srd, voff, soff_reg
        self.soff_setup = soff_setup or []

    def items(self, g, R):
        def mk(b):
            off = f" offset:{b*1024}" if b else ""
            return lambda: g.vmem(f"buffer_load_dwordx4 {self.voff[b]}, {self.srd}, {self.soff_reg} offen{off}{Piece.mod} lds", self.tag)
        su = self.soff_setup + [f"s_add_u32 m0, {R.swoff}, {self.unit*U}"]
        return [Item(su if b == 0 else [], mk(b)) for b in range(4)]

    def emit_now(self, g, R):
        for it in self.items(g, R):
            for s in it.setup:
                g(s)
            if it.setup:
                g("s_nop 0")
            it.fn()

    def alt(self, g, R):
        return [([(lambda s=s: g(s)) for s in it.setup], it.fn) for it in self.items(g, R)]


class PSpec:
    def __init__(self, unit, tag, tr, split, acc, b, breads=(), label=None):
        self.unit, self.tag, self.tr, self.split, self.acc, self.b, self.breads, self.label = unit, tag, tr, split, acc, b, list(breads), label


def a_reads(g, P, AF, n):
    h, nb = divmod(n, 4)
    p = P[h]
    NB = AF.n // 4
    st, off = (0, (p.unit - 4) * U) if p.unit < 8 else (1, (p.unit - 8) * U)
    buf = AF[(n % NB) * 4:(n % NB) * 4 + 4]
    dt = 2048 if p.split else 512
    g.ds(f"ds_read_b64_tr_b16 {buf[0:2]}, {p.tr[st][nb]} offset:{off}", ("A", n))
    g.ds(f"ds_read_b64_tr_b16 {buf[2:4]}, {p.tr[st][nb]} offset:{off+dt}", ("A", n))


def lead_reads(k, P, AF):
    g = k.g
    for n in range(k.opt.lead):
        if n % 4 == 0:
            g.wait_vm(lambda t: t == P[n // 4].tag)
        a_reads(g, P, AF, n)


def stream(k, R, P, AF, w2, w1=None, fills=None, extra=None, pre=None, led=False):
    g = k.g
    L = k.opt.lead
    nfr = 4 * len(P)
    NB = AF.n // 4
    w1 = w1 or {}
    fills = list(fills or [])
    extra = extra or {}
    if not led:
        lead_reads(k, P, AF)
    if pre:
        pre()
    sq = []

    def put(win, nslots, used0):
        free = nslots
        if not used0 and sq:
            g(sq.pop(0))
        while free > 0 and sq:
            g(sq.pop(0))
            free -= 1
        while free > 0 and fills and fills[0][0] <= win:
            free -= fills.pop(0)[2]() or 1
        while k.opt.soft and win % 2 and fills and fills[0][0] <= win and fills[0][1] <= win + 2:
            fills.pop(0)[2]()

    for n in range(nfr):
        h, nb = divmod(n, 4)
        p = P[h]
        buf = AF[(n % NB) * 4:(n % NB) * 4 + 4]
        if nb == 0 and p.label:
            assert not sq
            g.label(p.label)
        for qb in range(4):
            win = 4 * n + qb
            while fills and fills[0][1] <= win:
                fills.pop(0)[2]()
            acc, first = p.acc(nb, qb)
            B, btag = p.b(qb)
            g.wait_lgkm(lambda t: (t[0] == "A" and t[1] <= n) or (btag is not None and t == btag))
            g(f"{MF} {acc}, {buf}, {B}, {'0' if first else acc}")
            if qb == 0:
                if n + L < nfr:
                    a_reads(g, P, AF, n + L)
                else:
                    put(win, 2, False)
            elif qb == 1:
                if n in w2 and (w2[n].late or n == 0):
                    sq.extend(w2[n].setup)
                br = p.breads[nb:nb + 2] if nb in (0, 2) else []
                if k.opt.b_single and not (n in w1 or n + 1 in w1 or n - 1 in w1):
                    br = p.breads[nb:nb + 1]
                if n in w1:
                    assert not br
                    while sq:
                        g(sq.pop(0))
                    w1[n].fn()
                elif br:
                    for tg, txt in br:
                        g.ds(txt, tg)
                    while sq:
                        g(sq.pop(0))
                    if len(br) == 1 and fills and fills[0][0] <= win:
                        fills.pop(0)[2]()
                else:
                    put(win, 2, False)
                    while sq:
                        g(sq.pop(0))
            elif qb == 2:
                if n in w2:
                    w2[n].fn()
                else:
                    put(win, 2, False)
            else:
                nn = n + 1 + L
                vp = (lambda t: t == P[nn // 4].tag) if (nn < nfr and nn % 4 == 0) else None
                if k.opt.diag_nowait and P[0].split and n > 60:
                    vp = None
                nxt = P[(n + 1) // 4] if n + 1 < nfr else None
                bt = [nxt.b(q)[1] for q in range(4)] if (nxt and nb == 3) else []
                used = g.wait_both(vp, lambda t: (t[0] == "A" and t[1] <= n + 1) or t in bt)
                ns = 2
                if n + 1 in w1:
                    for s_ in w1[n + 1].setup:
                        g(s_)
                        ns -= used
                        used = True
                if n + 1 in w2 and not w2[n + 1].late:
                    sq.extend(w2[n + 1].setup)
                put(win, ns, used)
            for f in extra.get(win, []):
                f()
    assert not sq
    return fills


def gen_kernel(opt):
    k = K(opt)
    g = k.g
    Piece.mod = opt.w_mod
    cfg = at.Cfg()
    for a, v in opt.attn.items():
        setattr(cfg, a, v)
    cfg.KBASE, cfg.VBASE = 6 * U, 2 * U
    if opt.hybrid:
        cfg.hyb_range, cfg.dones_range = (1, 50), (2, 50)
    cfg.kslot = [2, 3, 0, 1]
    cfg.vslot = [2, 3, 0, 1]
    R = at.Regs()
    emit = lambda lst: [g(x) for x in lst]
    clo = lambda lst: [(lambda x=x: g(x)) for x in lst]
    S = Alloc("s", 4, 101)
    for n in ("X", "K", "V", "WQ", "WO", "WA", "WB", "WD", "OUT", "WS", "DBG"):
        setattr(R, "srd" + n, S(4, 4))
    ptr = S(16, 4)
    ptr2 = S(8, 4)
    R.swave = S(1); R.skvh = S(1); R.sp = S(1); R.swoff = S(1); R.stmp = S(1); R.stmp2 = S(1)
    R.stile = S(1); R.sloop = S(1); srot = S(1); sslow = S(1); sxo = S(1); sfl = S(1)
    R.st = S(2, 2); R.st2 = S(2, 2); sout = S(2, 2); sst = S(1); spin = S(1); spar = S(1); sskip = S(1); sxr = S(1); ssig = sskip; svid = S(1); sdb = S(1)
    srdF = R.srdOUT
    S2 = Alloc("s", ptr.b, ptr.b + 24)
    sG = S2(1); sGb = S2(1); sGl = S2(1); sQ = S2(1); sO = S2(1); sD = S2(1); sDb = S2(1); sDl = S2(1)
    sH = S2(1); sHb = S2(1); sHl = S2(1); sSP = S2(1)
    spl, sSL = sG, sGb
    sF, sFb, sFl, sFs, sFu = sO, sD, sDb, sDl, sHb
    msk = [S2(2, 2) for _ in range(4)]
    ACC = lambda blk, qb: Reg("v", (blk * 4 + qb) * 4, 4)
    R.O = [[ACC(db, qb) for qb in range(4)] for db in range(8)]
    R.S = [[Reg("v", 128 + b * 32 + qb * 8, 8) for qb in range(4)] for b in range(2)]
    AF = Reg("v", 128, 32)
    BF = Reg("v", 160, 32)
    DACC = lambda nb, qb: Reg("v", 160 + (qb * 4 + nb) * 4, 4)
    V = Alloc("v", 192, 254)
    R.negm = [V(4) for _ in range(4)]
    lq = V(4)
    R.l = [lq[j] for j in range(4)]
    R.kaddr = [V(1) for _ in range(4)]
    R.vaddr = [V(1) for _ in range(8)]
    R.kdma = [V(1) for _ in range(2)]
    R.vdma = [V(1) for _ in range(2)]
    tmp = V(4, 2)
    tm2 = V(4, 2)
    lane = V(1); voff16 = V(1); vhoff = V(1); voffx = V(1)
    voffS = [V(1) for _ in range(4)]
    trS = [[V(1) for _ in range(4)] for _ in range(2)]
    vpoll = V(1)
    V2 = Alloc("v", 160, 192)
    trN = [[V2(1) for _ in range(4)] for _ in range(2)]
    voffG = [V2(1) for _ in range(4)]
    voffQ = [V2(1) for _ in range(4)]
    lt = V2(12, 4)
    xw = V2(1)
    xa = V2(1)
    voffF = [tm2[j] for j in range(4)]
    HP = R.negm + [lt[0:4], lt[4:8], lt[8:12], lq]
    R.Q = [[Reg("a", (kk * 4 + qb) * 4, 4) for qb in range(4)] for kk in range(4)]
    R.kfrag = Reg("a", 64, 32)
    R.vfrag = Reg("a", 96, 16)
    R.ones = [Reg("a", 112 + 4 * q, 4) for q in range(4)]
    R.lq = lq
    R.lv = [tm2[3], V(1)]
    R.pend = []
    R.done = {}
    XB = lambda ks, qb: Reg("a", (ks * 4 + qb) * 4, 4)
    JL = opt.h_lds_j
    HB = lambda j, qb: Reg("a", (128 + 16 * j if j < JL else 96 + 16 * (j - JL) if j < JL + 2 else (96 + 16 * j) % 256) + 4 * qb, 4)

    g("s_cmp_ge_u32 s2, 256")
    g("s_cbranch_scc1 L_end")
    g(f"v_lshrrev_b32 {tmp[0]}, 6, v0")
    g(f"v_and_b32 {lane}, 63, v0")
    g(f"s_mov_b32 {sslow}, 0")
    if opt.code0:
        g(f"s_getpc_b64 {R.st}")
        g(f"v_lshlrev_b32 {tmp[1]}, 4, v0")
        g(f"global_load_dwordx4 v[64:67], {tmp[1]}, {R.st}")
        for j in range(1, opt.code0):
            g(f"v_add_u32 {tmp[1]}, 4096, {tmp[1]}")
            g(f"global_load_dwordx4 v[64:67], {tmp[1]}, {R.st}")
    g(f"v_readfirstlane_b32 {R.swave}, {tmp[0]}")
    if opt.stamps:
        g("v_mov_b32 v254, 0")
        g("v_mov_b32 v255, 0")
    g.label("L_restart")
    stamp(k, R, "start")
    g(f"s_load_dwordx8 {ptr2}, s[0:1], 64")
    g(f"s_load_dwordx16 {ptr}, s[0:1], 0")
    g(f"s_lshl_b32 {R.swoff}, {R.swave}, 12")
    if opt.ticket:
        g(f"s_getreg_b32 {sdb}, hwreg(HW_REG_XCC_ID, 0, 3)")
        g(f"s_or_b32 {R.stmp2}, {R.swave}, {sslow}")
        g("s_waitcnt lgkmcnt(0)")
        g("s_cbranch_scc1 L_noticket0")
        g(f"s_lshl_b32 {spin}, {sdb}, 5")
        g(f"s_mov_b32 {svid}, 1")
        g(f"s_atomic_add {svid}, {ptr2[4:6]}, {spin} glc")
        g.label("L_noticket0")
    g(f"v_and_b32 {tmp[0]}, 15, {lane}")
    g(f"v_lshlrev_b32 {tmp[0]}, 10, {tmp[0]}")
    g(f"v_lshrrev_b32 {tmp[1]}, 4, {lane}")
    g(f"v_lshl_add_u32 {xa}, {tmp[1]}, 4, {tmp[0]}")
    g(f"v_lshl_add_u32 {voffx}, {tmp[1]}, 3, {tmp[0]}")
    mark0 = len(g.lines)
    emit(dma_voffs(g, voffG, lane, tmp, 3584, False))
    emit(dma_voffs(g, voffQ, lane, tmp, 8192, False))
    emit(tr_addrs(g, trN, lane, tmp, R.swoff, False))
    at.lane_consts(g, R, cfg, tmp, lane, R.swave)
    emit(tr_addrs(g, trS, lane, tmp, R.swoff, True))
    emit(dma_voffs(g, voffS, lane, tmp, 1024, True))
    g(f"v_lshlrev_b32 {voff16}, 4, {lane}")
    ones, D1, D2 = lt[0:4], lt[4:8], lt[8:12]
    for j in range(4):
        g(f"v_mov_b32 {ones[j]}, 0x3f803f80")
    g(f"s_lshl_b32 {R.stmp}, {R.swave}, 10")
    g(f"v_add_u32 {xw}, {R.stmp}, {voff16}")
    g(f"v_mov_b32 {vpoll}, 0")
    cblock = []
    if not opt.ticket:
        cblock = g.lines[mark0:]
        del g.lines[mark0:]
    if opt.ticket:
        g(f"s_cmp_lg_u32 {sslow}, 0")
        g("s_cbranch_scc1 L_haverole")
        g(f"v_mov_b32 {tmp[0]}, {10*U-4}")
        g(f"s_cmp_lg_u32 {R.swave}, 0")
        g("s_cbranch_scc1 L_noticket1")
        g("s_waitcnt lgkmcnt(0)")
        g(f"s_cmp_lt_u32 {svid}, 32")
        g("s_cbranch_scc0 L_overflow")
        g.label("L_ticket")
        g(f"s_lshl_b32 {svid}, {svid}, 3")
        g(f"s_or_b32 {svid}, {svid}, {sdb}")
        g(f"v_mov_b32 {tmp[1]}, {svid}")
        g(f"ds_write_b32 {tmp[0]}, {tmp[1]}")
        g("s_waitcnt lgkmcnt(0)")
        g.label("L_noticket1")
        g("s_barrier")
        g(f"ds_read_b32 {tmp[1]}, {tmp[0]}")
        g("s_waitcnt lgkmcnt(0)")
        g(f"v_readfirstlane_b32 {svid}, {tmp[1]}")
        g("s_nop 0")
        g(f"s_and_b32 {svid}, {svid}, 255")
        g.label("L_haverole")
    else:
        g(f"s_mov_b32 {svid}, s2")
    hb = opt.hbits
    if hb == 0:
        g(f"s_and_b32 {R.skvh}, {svid}, 7")
        g(f"s_lshr_b32 {R.sp}, {svid}, 3")
        g(f"s_and_b32 {srot}, {R.sp}, 15")
        g(f"s_lshr_b32 {spar}, {R.sp}, 4")
    else:
        assert hb == 1
        g(f"s_and_b32 {R.skvh}, {svid}, 3")
        g(f"s_lshl_b32 {R.skvh}, {R.skvh}, 1")
        g(f"s_bfe_u32 {R.stmp}, {svid}, {3 | (1 << 16)}")
        g(f"s_or_b32 {R.skvh}, {R.skvh}, {R.stmp}")
        g(f"s_lshl_b32 {srot}, {R.stmp}, 3")
        g(f"s_bfe_u32 {R.sp}, {svid}, {2 | (1 << 16)}")
        g(f"s_lshl_b32 {R.sp}, {R.sp}, 4")
        g(f"s_lshr_b32 {R.stmp}, {svid}, 4")
        g(f"s_or_b32 {R.sp}, {R.sp}, {R.stmp}")
        g(f"s_and_b32 {spar}, {R.sp}, 1")
        g(f"s_add_u32 {srot}, {srot}, {R.sp}")
        g(f"s_and_b32 {srot}, {srot}, 14")
    g(f"s_lshl_b32 {sxo}, {R.sp}, 16")
    g(f"s_lshl_b32 {R.stmp}, {R.swave}, 14")
    g(f"s_add_u32 {sxo}, {sxo}, {R.stmp}")
    g(f"s_lshl_b32 {sxr}, {srot}, 6")
    g("s_waitcnt lgkmcnt(0)")
    srd(g, R.srdX, ptr[0:2], 2 << 20)
    if opt.tlb_first:
        g(f"v_lshlrev_b32 {tmp[2]}, 20, {lane}")
        g("s_mov_b64 exec, 3")
        for pp in (ptr[12:14], ptr[14:16]):
            g(f"global_load_dword v253, {tmp[2]}, {pp}")
        g("s_mov_b64 exec, -1")
    for j in range(16):
        g(f"s_or_b32 {R.stmp}, {sxo}, {sxr}")
        g.vmem(f"buffer_load_dwordx4 v[{4*j}:{4*j+3}], {xa}, {R.srdX}, {R.stmp} offen", ("X", j))
        if j < 15:
            g(f"s_add_u32 {sxr}, {sxr}, 64")
            g(f"s_and_b32 {sxr}, {sxr}, 1023")
        if j == 7:
            mark = len(g.lines)
    xtail = g.lines[mark:]
    del g.lines[mark:]
    stamp(k, R, "xissue")
    if opt.stouch:
        MB = 1 << 20
        g(f"s_lshl_b32 {R.stmp}, {R.skvh}, 19")
        early = [(ptr[12:14], 0), (ptr[14:16], 0), (ptr[12:14], MB), (ptr[14:16], MB), (ptr[6:8], 0), (ptr[6:8], MB), (ptr[6:8], 2 * MB), (ptr[6:8], 3 * MB),
                 (ptr[2:4], R.stmp), (ptr[4:6], R.stmp)]
        late = [(ptr[8:10], R.stmp), (ptr2[0:2], 0), (ptr2[0:2], MB), (ptr2[2:4], sxo), (ptr2[4:6], 0)]
        for pp, off in early + (late if opt.stouch > 1 else []):
            if isinstance(off, int) and off:
                g(f"s_mov_b32 {R.stmp2}, {off}")
                off = R.stmp2
            g(f"s_load_dword {spin}, {pp}, {off}")
        g(f"s_mul_i32 {R.stmp}, {R.sp}, {56*4096}")
        g(f"s_load_dword {spin}, {ptr2[6:8]}, {R.stmp}")
        g(f"s_add_u32 {R.stmp}, {R.stmp}, {56*4096-4}")
        g(f"s_load_dword {spin}, {ptr2[6:8]}, {R.stmp}")
        if opt.stouch > 1:
            g(f"s_lshl_b32 {R.stmp}, {R.sp}, 19")
            g(f"s_add_u32 {R.stmp}, {R.stmp}, {SP_BASE}")
            g(f"s_load_dword {spin}, {ptr2[6:8]}, {R.stmp}")
    g.lines += cblock
    g(f"s_lshl_b32 {R.stmp}, {spar}, 7")
    for kk in range(4):
        g(f"v_xor_b32 {R.kaddr[kk]}, {R.stmp}, {R.kaddr[kk]}")
    g(f"s_cmp_eq_u32 {R.skvh}, 7")
    g(f"s_cselect_b32 {sskip}, 1, {sslow}")
    g(f"s_cmp_eq_u32 {spar}, 0")
    g(f"s_cselect_b64 {R.srdWA[0:2]}, {ptr[12:14]}, {ptr[14:16]}")
    g(f"s_cselect_b64 {R.srdWB[0:2]}, {ptr[14:16]}, {ptr[12:14]}")
    for d in (R.srdWA, R.srdWB):
        g(f"s_mov_b32 {d[2]}, {512*3584}")
        g(f"s_mov_b32 {d[3]}, 0x20000")
    g(f"s_lshl_b32 {R.stmp}, {R.skvh}, 19")
    srd(g, R.srdWQ, ptr[6:8], 4 << 20)
    srd(g, R.srdK, ptr[2:4], 524288, R.stmp)
    srd(g, R.srdV, ptr[4:6], 524288, R.stmp)
    srd(g, R.srdWO, ptr[8:10], 524288, R.stmp)
    srd(g, R.srdWD, ptr2[0:2], 1792 * 1024)
    g(f"s_mov_b64 {sout}, {ptr2[2:4]}")
    srd(g, R.srdDBG, ptr2[4:6], 256)
    srd(g, R.srdWS, ptr2[6:8], 256 << 20)
    if opt.stamps:
        g(f"s_lshl_b32 {sst}, {svid}, 2")
        g(f"s_add_u32 {sst}, {sst}, {R.swave}")
        g(f"s_lshl_b32 {sst}, {sst}, 9")
        g(f"s_add_u32 {sst}, {sst}, {ST_BASE}")
    GS = 32 * 3584
    g(f"s_lshl_b32 {sGb}, {R.skvh}, 9")
    g(f"s_lshl_b32 {R.stmp}, {R.swave}, 7")
    g(f"s_add_u32 {sGb}, {sGb}, {R.stmp}")
    g(f"s_add_u32 {sGl}, {sGb}, {16*GS}")
    g(f"s_mul_i32 {sG}, {srot}, {GS}")
    g(f"s_add_u32 {sG}, {sG}, {sGb}")
    g(f"s_lshl_b32 {sQ}, {R.skvh}, 2")
    g(f"s_add_u32 {sQ}, {sQ}, {R.swave}")
    g(f"s_lshl_b32 {sQ}, {sQ}, 1")
    g(f"s_add_u32 {sQ}, {sQ}, {spar}")
    g(f"s_lshl_b32 {sQ}, {sQ}, 7")
    g(f"s_lshl_b32 {R.stmp}, {srot}, 18")
    g(f"s_add_u32 {sQ}, {sQ}, {R.stmp}")
    g(f"s_mul_i32 {sH}, {R.sp}, {56*4096}")
    g(f"s_lshl_b32 {R.stmp}, {R.skvh}, 15")
    g(f"s_add_u32 {sH}, {sH}, {R.stmp}")
    g(f"s_cmp_eq_u32 {sskip}, 0")
    g(f"s_cselect_b32 {sH}, {sH}, {H_DUMMY}")
    g(f"s_lshl_b32 {R.stmp}, {R.swave}, 13")
    g(f"s_add_u32 {sH}, {sH}, {R.stmp}")
    g(f"s_lshl_b32 {sfl}, {R.sp}, 2")
    g(f"s_add_u32 {sfl}, {sfl}, {R.swave}")
    g(f"s_lshl_b32 {sfl}, {sfl}, 3")
    g(f"s_add_u32 {sfl}, {sfl}, {R.skvh}")
    g(f"s_lshl_b32 {sfl}, {sfl}, 2")
    g(f"s_add_u32 {sfl}, {sfl}, {FL_BASE}")
    g(f"s_lshr_b32 {sdb}, {R.sp}, 2")
    g(f"s_lshl_b32 {sdb}, {sdb}, 3")
    g(f"s_and_b32 {R.stmp}, {R.sp}, 3")
    g(f"s_add_u32 {sdb}, {sdb}, {R.stmp}")
    g(f"s_lshl_b32 {sdb}, {sdb}, 2")
    g(f"v_and_b32 {tmp[0]}, 3, {lane}")
    for j in range(1, 4):
        g(f"v_cmp_eq_u32 {msk[j]}, {j}, {tmp[0]}")
    g(f"v_bfe_u32 {tmp[0]}, {lane}, 2, 2")
    g(f"v_lshrrev_b32 {tmp[1]}, 4, {lane}")
    g(f"v_cmp_eq_u32 {msk[0]}, {tmp[0]}, {tmp[1]}")

    def kv_piece(which, tile, setup=True):
        u = (cfg.KBASE + cfg.kslot[tile % 4] * U if which == "K" else cfg.VBASE + cfg.vslot[tile % 4] * U) // U
        d = R.kdma if which == "K" else R.vdma
        return Piece((which, tile), u, R.srdK if which == "K" else R.srdV, [d[0], d[0], d[1], d[1]], R.stile,
                     [f"s_mov_b32 {R.stile}, {tile*U}"] if setup else [])

    def gq_piece(h):
        u = RING_GQ[h % 6]
        if h < 32:
            su = [f"s_add_u32 {sG}, {sG}, {GS}", f"s_cmp_lt_u32 {sG}, {sGl}", f"s_cselect_b32 {sG}, {sG}, {sGb}"] if h else []
            return Piece(("W", h), u, R.srdWB if h >= 16 else R.srdWA, voffG, sG, su)
        if h < 64:
            su = [f"s_add_u32 {sQ}, {sQ}, {1<<18}", f"s_and_b32 {sQ}, {sQ}, {(4<<20)-1}"] if h != 32 else []
            if h == 48:
                su.append(f"s_xor_b32 {sQ}, {sQ}, 128")
            return Piece(("W", h), u, R.srdWQ, voffQ, sQ, su)
        p = kv_piece(*[("K", 0), ("K", 1), ("V", 0), ("V", 1), ("K", 2)][h - 64])
        assert p.unit == u
        return p

    g(f"s_cmp_eq_u32 {sskip}, 0")
    g(f"s_cselect_b64 {srdF[0:2]}, {R.srdWA[0:2]}, {R.srdWQ[0:2]}")
    g(f"s_cselect_b32 {srdF[2]}, {R.srdWA[2]}, {R.srdWQ[2]}")
    g(f"s_mov_b32 {srdF[3]}, 0x20000")
    g(f"s_cselect_b32 {sF}, {sG}, {sQ}")
    g(f"s_mov_b32 {sFs}, {GS}")
    g(f"s_cselect_b32 {sFs}, {sFs}, {1<<18}")
    g(f"s_cselect_b32 {sFu}, 0, {2*U}")
    g(f"s_cselect_b64 vcc, -1, 0")
    g(f"s_and_b32 {R.stmp}, {sQ}, 8191")
    g(f"s_cmp_eq_u32 {sskip}, 0")
    g(f"s_cselect_b32 {sFb}, {sGb}, {R.stmp}")
    g(f"s_lshl_b32 {sFl}, {sFs}, 4")
    g(f"s_add_u32 {sFl}, {sFl}, {sFb}")
    g(f"s_add_u32 {sFu}, {sFu}, {R.swoff}")
    for b in range(4):
        g(f"v_cndmask_b32 {voffF[b]}, {voffQ[b]}, {voffG[b]}, vcc")
    fillq = []
    for h in range(opt.nfill):
        for b in range(4):
            su = []
            if b == 0:
                if h:
                    su += [f"s_add_u32 {sF}, {sF}, {sFs}", f"s_cmp_lt_u32 {sF}, {sFl}", f"s_cselect_b32 {sF}, {sF}, {sFb}"]
                if h == 4:
                    su += [f"s_cmp_eq_u32 {sskip}, 0", f"s_cselect_b32 {sFu}, {4*U}, 0", f"s_add_u32 {sFu}, {sFu}, {R.swoff}", f"s_add_u32 m0, {sFu}, {4*U}"]
                else:
                    su += [f"s_add_u32 m0, {sFu}, {(4+h)*U}"]
            off = f" offset:{b*1024}" if b else ""
            fillq.append(Item(su, lambda b=b, h=h, off=off: g.vmem(f"buffer_load_dwordx4 {voffF[b]}, {srdF}, {sF} offen{off} lds", ("W", h))))

    def fill_one():
        if fillq:
            it = fillq.pop(0)
            emit(it.setup)
            if it.setup:
                g("s_nop 0")
            it.fn()
    def touch(dst, tag, items, sh):
        g(f"v_lshlrev_b32 {tmp[0]}, {sh}, {lane}")
        for srd_, soff, nbytes in items:
            n_ = min(64, -(-nbytes >> sh) + (1 if soff != "0" else 0))
            g(f"s_mov_b64 exec, {(1 << n_) - 1 if n_ < 32 else -1}")
            g.vmem(f"buffer_load_dword {dst}, {tmp[0]}, {srd_}, {soff} offen", tag)
        g("s_mov_b64 exec, -1")

    def tlb_touch():
        if opt.tlb_sh == 20:
            touch("v253", ("PF",), [(R.srdWQ, "0", 4 << 20), (R.srdWS, "0", 8 << 20), (R.srdK, "0", 1 << 19), (R.srdV, "0", 1 << 19), (R.srdWB, "0", 512 * 3584)], 20)
        else:
            touch("v253", ("PF",), [(R.srdWB, "0", 512 * 3584), (R.srdWQ, "0", 4 << 20), (R.srdK, "0", 1 << 19), (R.srdV, "0", 1 << 19), (R.srdWS, sH, 1)], opt.tlb_sh)

    def code_pf():
        if not opt.codepf:
            return
        g(f"s_getpc_b64 {R.st}")
        g.label("L_pc")
        g(f"s_and_b32 {R.stmp}, {R.sp}, 7")
        g(f"s_lshl_b32 {R.stmp}, {R.stmp}, 2")
        g(f"s_add_u32 {R.stmp}, {R.stmp}, {R.swave}")
        g(f"s_lshl_b32 {R.stmp}, {R.stmp}, 12")
        g(f"v_lshl_add_u32 {tmp[0]}, {lane}, 6, {R.stmp}")
        g(f"v_min_u32 {tmp[0]}, L_end-L_pc, {tmp[0]}")
        g.vmem(f"global_load_dword v253, {tmp[0]}, {R.st}", ("PF",))

    if opt.pf_early:
        code_pf()
        g.vm.insert(8, g.vm.pop())
    if opt.tlb0 == 1:
        tlb_touch()
        g.vm[8:8] = [g.vm.pop() for _ in range(5)]
    g.lines += xtail
    stamp(k, R, "xissue2")
    g("s_mov_b64 exec, 1")
    g.vmem(f"buffer_store_dword {vpoll}, off, {R.srdWS}, {sfl} sc1", ("FZ",))
    g("s_mov_b64 exec, -1")
    if not opt.pf_early:
        code_pf()

    UN = [64 + j for j in range(96)] + [192 + j for j in range(16)]

    def unpack(ks, dst):
        for d in range(4):
            g(f"v_lshlrev_b32 v{dst+2*d}, 16, v{4*ks+d}")
            g(f"v_and_b32 v{dst+2*d+1}, 0xffff0000, v{4*ks+d}")
    for ks in range(16):
        g.wait_vm(lambda t: t == ("X", ks))
        X = Reg("v", 4 * ks, 4)
        g(f"{MF} {D1}, {ones}, {X}, {'0' if ks == 0 else D1}")
        g(f"{MF} {D2}, {X}, {X}, {'0' if ks == 0 else D2}")
        if ks < 14:
            unpack(ks, UN[8 * ks])
        if ks in opt.fill_stats:
            fill_one()
    stamp(k, R, "x15")
    nf = [len(opt.fill_stats)]

    def fills_at(pos):
        while fillq and opt.fill_pos[nf[0]] <= pos:
            fill_one()
            nf[0] += 1
    if opt.stouch:
        g("s_waitcnt lgkmcnt(0)")
    fills_at(0)
    if len(opt.fill_stats) >= 8:
        g("s_nop 7")
    b_ = tmp[1]
    g(f"v_cndmask_b32 {tmp[2]}, {D2[0]}, {D2[1]}, {msk[1]}")
    g(f"v_cndmask_b32 {tmp[2]}, {tmp[2]}, {D2[2]}, {msk[2]}")
    g(f"v_cndmask_b32 {tmp[2]}, {tmp[2]}, {D2[3]}, {msk[3]}")
    g(f"v_cndmask_b32 {tmp[2]}, 0, {tmp[2]}, {msk[0]}")
    g(f"v_mul_f32 {b_}, {fbits(1/512)}, {D1[0]}")
    emit(reduce_G_ops([tmp[2]], [tmp[3]], "v_add_f32"))
    g(f"v_mul_f32 {tmp[3]}, {b_}, {b_}")
    g(f"s_mov_b32 {R.stmp}, {fbits(1/512)}")
    g(f"v_fma_f32 {tmp[2]}, {tmp[2]}, {R.stmp}, -{tmp[3]}")
    g(f"v_max_f32 {tmp[2]}, 0, {tmp[2]}")
    g(f"v_add_f32 {tmp[2]}, {fbits(1e-5)}, {tmp[2]}")
    g(f"v_rsq_f32 {tmp[2]}, {tmp[2]}")
    g("s_nop 0")
    AB = lt[0:4]
    g(f"v_mul_f32 {AB[0]}, {fbits(C_SCALE)}, {tmp[2]}")
    g(f"v_mul_f32 {AB[1]}, {fbits(C_SCALE)}, {tmp[2]}")
    g(f"v_mul_f32 {AB[2]}, {AB[0]}, -{b_}")
    g(f"v_mul_f32 {AB[3]}, {AB[0]}, -{b_}")
    for ks in range(16):
        fills_at(ks)
        src = UN[8 * ks] if ks < 14 else UN[8 * (ks - 14)]
        if ks >= 14:
            unpack(ks, src)
        if opt.wr_delay and ks:
            g.ds(f"ds_write_b128 {xw}, v[{4*ks-4}:{4*ks-1}] offset:{(ks-1)*4096}", ("W",))
        for d in range(4):
            g(f"v_pk_fma_f32 v[{src+2*d}:{src+2*d+1}], v[{src+2*d}:{src+2*d+1}], {AB[0:2]}, {AB[2:4]}")
        for d in range(4):
            g(f"v_cvt_pk_bf16_f32 v{4*ks+d}, v{src+2*d}, v{src+2*d+1}")
        if not opt.wr_delay or ks == 15:
            g.ds(f"ds_write_b128 {xw}, v[{4*ks}:{4*ks+3}] offset:{ks*4096}", ("W",))
        if len(g.lgkm) >= 14:
            g("s_waitcnt lgkmcnt(8)")
            g.lgkm = g.lgkm[-8:]
    fills_at(16)
    if opt.tlb0 == 2:
        tlb_touch()
    g(f"s_cmp_eq_u32 {sskip}, 0")
    g(f"s_cselect_b32 {sG}, {sF}, {sG}")
    g(f"s_cselect_b32 {sQ}, {sQ}, {sF}")
    srd(g, R.srdOUT, sout, 2 << 20)

    def bread(ks, qb):
        return (("B", ks, qb), f"ds_read_b128 {XB(ks, qb)}, {voff16} offset:{(ks*4+qb)*1024}")
    P = []
    for h in range(64):
        ks, half = h & 15, (h >> 4) & 1
        P.append(PSpec(RING_GQ[h % 6], ("W", h), trN, False,
                       (lambda nb, qb, half=half, ks=ks: (ACC(4 * half + nb, qb), ks == 0)),
                       (lambda qb, h=h, ks=ks: (XB(ks, qb), ("B", ks, qb) if h < 16 else None)),
                       [bread(h + 1, qb) for qb in range(4)] if h < 15 else [],
                       "L_Q" if h == 32 else None))
    HA = Reg("a", 128, 32)

    def h_store(j):
        off = f" offset:{(j&3)*1024}" if j & 3 else ""
        return Item([f"s_add_u32 {sH}, {sH}, 4096"] if j == 4 else [],
                    lambda: g.vmem(f"buffer_store_dwordx4 {HA[4*j:4*j+4] if opt.hs_late else HP[j]}, {voff16}, {R.srdWS}, {sH} offen{off} sc1", ("HS", 0)))
    if opt.hs_late:
        q = [it for h in range(opt.nfill, 69) for it in gq_piece(h).items(g, R)]
    else:
        q = [it for h in range(opt.nfill, 67) for it in gq_piece(h).items(g, R)] + [h_store(j) for j in range(8)]
    w2, w1 = {}, {}
    nx, nxt = 4 * (5 - opt.nfill), opt.catch[0]
    for gp in range(256):
        if nx and gp >= nxt and gp % 2 and not q[1].setup and gp != 128:
            w1[gp] = q.pop(0)
            nx, nxt = nx - 1, nxt + opt.catch[1]
        w2[gp] = q.pop(0)
    assert not q
    w2[128].late = True
    fills = []
    for fb in range(4):
        for qb in range(4):
            for r in range(4):
                fills.append((31 * 16 + 4 * fb + qb + 5, 32 * 16 + 4 * fb + qb,
                              lambda fb=fb, qb=qb, r=r: g(f"v_mul_f32 {ACC(4+fb, qb)[r]}, {ACC(fb, qb)[r]}, {ACC(4+fb, qb)[r]}")))
    for u in range(2):
        for qb in range(4):
            for b in range(2):
                for hf in range(2):
                    X_ = ACC(4 + 2 * u + b, qb)
                    fills.append((0, 48 * 16, lambda X_=X_, d=HP[u*4+qb][2*b+hf], hf=hf: g(f"v_cvt_pk_bf16_f32 {d}, {X_[2*hf]}, {X_[2*hf+1]}")))

    def q_epi(kk):
        o = []
        for qb in range(4):
            A_, B_ = ACC(2 * kk, qb), ACC(2 * kk + 1, qb)
            o += [f"v_cvt_pk_bf16_f32 {A_[0]}, {A_[0]}, {A_[1]}", f"v_cvt_pk_bf16_f32 {A_[1]}, {A_[2]}, {A_[3]}",
                  f"v_cvt_pk_bf16_f32 {B_[0]}, {B_[0]}, {B_[1]}", f"v_cvt_pk_bf16_f32 {B_[1]}, {B_[2]}, {B_[3]}"]
        for sw in ("v_permlane32_swap_b32", "v_permlane16_swap_b32"):
            for qb in range(4):
                A_, B_ = ACC(2 * kk, qb), ACC(2 * kk + 1, qb)
                o += [f"{sw} {A_[0]}, {B_[0]}", f"{sw} {A_[1]}, {B_[1]}"]
        for qb in range(4):
            A_, B_ = ACC(2 * kk, qb), ACC(2 * kk + 1, qb)
            Q = R.Q[kk][qb]
            o += [f"v_accvgpr_write_b32 {Q[0]}, {A_[0]}", f"v_accvgpr_write_b32 {Q[1]}, {A_[1]}",
                  f"v_accvgpr_write_b32 {Q[2]}, {B_[0]}", f"v_accvgpr_write_b32 {Q[3]}, {B_[1]}"]
        return o
    for kk in range(2):
        for s_ in q_epi(kk):
            fills.append((50 * 16, 10 ** 9, lambda s_=s_: g(s_)))
    on = [f"v_and_b32 {tmp[0]}, 3, {lane}", f"v_mov_b32 {tmp[1]}, 0x3f803f80"]
    for q_ in range(4):
        on += [f"v_cmp_eq_u32 vcc, {q_}, {tmp[0]}", "s_nop 1", f"v_cndmask_b32 {tmp[2]}, 0, {tmp[1]}, vcc"]
        on += [f"v_accvgpr_write_b32 {R.ones[q_][j]}, {tmp[2]}" for j in range(4)]
    for s_ in on:
        fills.append((56 * 16, 10 ** 9, lambda s_=s_: g(s_)))
    if opt.hs_late:
        for j in range(32):
            fills.append((58 * 16, 10 ** 9, lambda j=j: g(f"v_accvgpr_write_b32 {HA[j]}, {HP[j//4][j%4]}")))
    ex = {}
    if opt.stamps:
        for h, nm in ((16, "g1"), (33, "g2"), (48, "q1")) + tuple((h_, f"p{h_}") for h_ in opt.gq_stamps):
            ex[16 * h - 1] = [lambda nm=nm: stamp(k, R, nm)]
    e2 = q_epi(2)
    if opt.hoist:
        ex.setdefault(63 * 16 + 3, []).extend([lambda: g.wait_vm(lambda t: t == ("K", 0)), lambda: g("s_barrier")])
        kr = [op for n in range(-8, 0) for op in at.read_ops(g, R, cfg, n)]

        def two(a, b):
            a()
            b()
            return 2
        for j, w_ in enumerate((5, 8, 9, 12)):
            fills.append((63 * 16 + w_, 63 * 16 + w_ + 1, lambda j=j: two(kr[2 * j], kr[2 * j + 1])))
        for _ in range(4):
            fills.append((63 * 16 + 13, 10 ** 9, lambda s_=e2.pop(0): g(s_)))
    g(f"s_cmp_lg_u32 {sskip}, 0")
    g("s_cbranch_scc1 L_skipG")
    if opt.ln_lead:
        lead_reads(k, P, AF)
    g.wait_lgkm(lambda t: t == ("W",))
    g("s_barrier")
    stamp(k, R, "ln")
    for qb in range(4):
        tg, txt = bread(0, qb)
        g.ds(txt, tg)
    rest = stream(k, R, P, AF, w2, w1, fills, ex, led=opt.ln_lead)
    assert not rest
    stamp(k, R, "q2")
    if not opt.hoist:
        g.wait_vm(lambda t: t == ("K", 0))
        g("s_barrier")
        for n in range(-8, 0):
            for op in at.read_ops(g, R, cfg, n):
                op()
    for j, it in enumerate(kv_piece("V", 2 if opt.hs_late else 1).items(g, R)):
        emit(it.setup)
        n_ = -(-len(e2) // (4 - j))
        emit(e2[:n_])
        del e2[:n_]
        it.fn()
    e3 = q_epi(3)
    mx = [tmp[j] for j in range(4)]
    mt = [tm2[j] for j in range(4)]
    g(f"s_cmp_lg_u32 {sslow}, 0")
    g("s_cbranch_scc1 L_maxpass")

    def qk0(kk):
        for kb in range(2):
            for qb in range(4):
                n = -8 + 4 * kb + kk
                Sx = R.S[0][qb][4 * kb:4 * kb + 4]
                g.wait_lgkm(lambda t: t[0] == "F" and t[1] <= n)
                g(f"{MF} {Sx}, {at.fbuf(R, n)}, {R.Q[kk][qb]}, {'0' if kk == 0 else Sx}")
                for _ in range(2):
                    if e3:
                        g(e3.pop(0))
    lg_save = list(g.lgkm)
    qk0(0)
    qk0(1)
    qk0(2)
    assert not e3
    g("s_nop 0")
    qk0(3)
    for n in range(8, 13):
        for op in at.read_ops(g, R, cfg, n):
            op()
    g("s_nop 2")
    for qb in range(4):
        Sx = R.S[0][qb]
        g(f"v_max3_f32 {mx[qb]}, {Sx[0]}, {Sx[1]}, {Sx[2]}")
        g(f"v_max3_f32 {mx[qb]}, {mx[qb]}, {Sx[3]}, {Sx[4]}")
        g(f"v_max3_f32 {mx[qb]}, {mx[qb]}, {Sx[5]}, {Sx[6]}")
        g(f"v_max_f32 {mx[qb]}, {mx[qb]}, {Sx[7]}")
    emit(reduce_G_ops(mx, mt, "v_max_f32"))
    g.label("L_havemax")
    stamp(k, R, "qk0")
    for qb in range(4):
        for j in range(2):
            g(f"v_sub_f32 {R.negm[qb][j]}, 0, {mx[qb]}")
        g(f"v_mov_b64 {R.negm[qb][2:4]}, {R.negm[qb][0:2]}")
        for j in range(0, 8, 2):
            g(f"v_pk_add_f32 {R.S[0][qb][j:j+2]}, {R.S[0][qb][j:j+2]}, {R.negm[qb][0:2]}")
    if opt.hybrid:
        g(f"v_mov_b32 {R.lv[0]}, 0")
        g(f"v_mov_b32 {R.lv[1]}, 0")
    if opt.tlb:
        if opt.tlb_sh2 == 20:
            touch(tmp[1], ("HS", 0), [(R.srdWS, "0", 24 << 20), (R.srdOUT, "0", 2 << 20), (R.srdWD, "0", 1792 * 1024), (R.srdWO, "0", 1 << 19)], 20)
        else:
            g(f"s_mul_i32 {R.stmp}, {R.sp}, {56*4096}")
            g(f"s_lshl_b32 {R.stmp2}, {R.sp}, 19")
            g(f"s_add_u32 {R.stmp2}, {R.stmp2}, {SP_BASE}")
            touch(tmp[1], ("HS", 0), [(R.srdWS, R.stmp, 56 * 4096), (R.srdWS, R.stmp2, 1 << 19), (R.srdOUT, sxo, 1), (R.srdWD, "0", 1792 * 1024), (R.srdWO, "0", 1 << 19)], opt.tlb_sh2)
    npre = 8 - cfg.G0 // 4
    for p_ in range(npre):
        for j in range(2):
            r_ = R.S[0][p_ // 4][2 * (p_ % 4) + j]
            g(f"v_exp_f32 {r_}, {r_}")
    g("s_nop 0")
    for p_ in range(npre):
        S_ = R.S[0][p_ // 4]
        j = 2 * (p_ % 4)
        g(f"v_cvt_pk_bf16_f32 {S_[j//2]}, {S_[j]}, {S_[j+1]}")
        R.done[(0, p_ // 4)] = R.done.get((0, p_ // 4), 0) + 1
    hsa = [(clo(h_store(j).setup), h_store(j).fn) for j in range(8)]
    at.emit_step(g, R, cfg, 0, groups=range(8, 16), alt=hsa[:4] if opt.hs_late else kv_piece("K", 2).alt(g, R), alt_groups=[8, 9, 10, 11])
    g(f"s_mov_b32 {R.sloop}, 0")
    g(f"s_or_b32 {ssig}, {R.swave}, {sslow}")
    v2 = kv_piece("V", 2).alt(g, R)
    x1 = {(1 + 2 * j, 4): [v2[j][1]] for j in range(2)}
    x1[(0, 0)] = v2[0][0]
    x1[(2, 0)] = [v2[2][1]]
    x1[(4, 0)] = [v2[3][1], lambda: g(f"s_mov_b32 {R.stile}, {3*U}")]
    if opt.hybrid:
        k3 = kv_piece("K", 3).alt(g, R)
        f4 = hsa[4:] if opt.hs_late else v2
        x1 = {(1 + 2 * j, 4): [f4[j][1]] for j in range(4)}
        x1[(0, 0)] = f4[0][0]
        x1[(8, 0)], x1[(9, 0)] = k3[0][0][:1], k3[0][0][1:]
        x1[(13, 0)], x1[(14, 0)] = [k3[2][1]], [k3[3][1]]
        at.emit_step(g, R, cfg, 1, first_pv=True, dma=False, xtra=x1, alt=[([], k3[0][1]), ([], k3[1][1])], alt_groups=[11, 12])
    if opt.hs_late and not opt.hybrid:
        x1 = {(1 + 2 * j, 4): [hsa[4 + j][1]] for j in range(4)}
        x1[(0, 0)] = hsa[4][0]
        x1[(1, 0)] = [lambda: g(f"s_mov_b32 {R.stile}, {3*U}")]
    if not opt.hybrid:
        at.emit_step(g, R, cfg, 1, first_pv=True, xtra=x1)
    g.vm = [t for t in g.vm if t[0] != "HS"]
    st_l, st_v = list(g.lgkm), list(g.vm)
    stamp(k, R, "attn0")
    g.lgkm = list(st_l)
    g.raw(f".p2align {opt.align}")
    g.label("L_loop")
    for i in range(2, 10):
        at.emit_step(g, R, cfg, i)
    sh = lambda q, d: [(t[0], t[1] - d) for t in q]
    assert sh(g.lgkm, 128) == st_l, (g.lgkm, st_l)
    assert sh(g.vm, 4) == st_v, (g.vm, st_v)
    assert not R.pend
    NIT = 7 - opt.peel
    g(f"s_or_b32 {R.stmp}, {R.sloop}, {ssig}")
    g("s_cbranch_scc0 L_signal")
    g.label("L_signalled")
    g(f"s_add_u32 {R.sloop}, {R.sloop}, 1")
    g(f"s_cmp_lt_u32 {R.sloop}, {NIT}")
    g("s_cbranch_scc1 L_loop")
    g.lgkm = [(t[0], t[1] + 128 * (NIT - 1)) for t in g.lgkm]
    g.vm = [(t[0], t[1] + 4 * (NIT - 1)) for t in g.vm]
    R.done = {(h_ + 8 * (NIT - 1), q_): c_ for (h_, q_), c_ in R.done.items()}
    st_l = list(g.lgkm)
    stamp(k, R, "loop")
    g.lgkm = st_l
    g.vmem(f"buffer_load_dword {vpoll}, off, {R.srdDBG}, {sdb} offset:4 sc1", ("POLL",))
    r14 = R.stmp2
    sc = [f"s_lshl_b32 {sO}, {R.swave}, 1", f"s_add_u32 {sO}, {sO}, {spar}", f"s_lshl_b32 {sSP}, {R.sp}, 3", f"s_add_u32 {sSP}, {sSP}, {sO}",
          f"s_lshl_b32 {sSP}, {sSP}, 3", f"s_add_u32 {sSP}, {sSP}, {R.skvh}", f"s_lshl_b32 {sSP}, {sSP}, 13", f"s_add_u32 {sSP}, {sSP}, {SP_BASE}",
          f"s_lshl_b32 {sO}, {sO}, 7", f"s_lshl_b32 {R.stmp}, {srot}, 15", f"s_add_u32 {sO}, {sO}, {R.stmp}",
          f"s_add_u32 {r14}, {srot}, {spar}", f"s_cmp_ge_u32 {r14}, 14", f"s_cselect_b32 {R.stmp}, 14, 0", f"s_sub_u32 {r14}, {r14}, {R.stmp}",
          f"s_mul_i32 {sDb}, {R.swave}, {14*32768}", f"s_lshl_b32 {R.stmp}, {R.skvh}, 7", f"s_add_u32 {sDb}, {sDb}, {R.stmp}",
          f"s_add_u32 {sDl}, {sDb}, {14*32768}", f"s_lshl_b32 {sD}, {r14}, 15", f"s_add_u32 {sD}, {sD}, {sDb}",
          f"s_mul_i32 {sHb}, {R.sp}, {56*4096}", f"s_mul_i32 {R.stmp}, {R.swave}, {14*4096}", f"s_add_u32 {sHb}, {sHb}, {R.stmp}",
          f"s_add_u32 {sHl}, {sHb}, {14*4096}", f"s_lshl_b32 {sH}, {r14}, 12", f"s_add_u32 {sH}, {sH}, {sHb}"]

    def od_piece(h):
        u = RING_OD[h % 6]
        if h < 32:
            su = [f"s_add_u32 {sO}, {sO}, 32768", f"s_and_b32 {sO}, {sO}, {(1<<19)-1}"] if h else []
            if h == 16:
                su.append(f"s_xor_b32 {sO}, {sO}, 128")
            return Piece(("WO", h), u, R.srdWO, voffS, sO, su)
        j = h - 32
        su = [f"s_add_u32 {sD}, {sD}, 32768", f"s_cmp_lt_u32 {sD}, {sDl}", f"s_cselect_b32 {sD}, {sD}, {sDb}"] if j else []
        return Piece(("WO", h), u, R.srdWD, voffS, sD, su)

    vh = [vhoff, tm2[0], tm2[1], tm2[2]]

    def h_item(j, qb):
        su = [f"s_add_u32 {sH}, {sH}, 4096", f"s_cmp_lt_u32 {sH}, {sHl}", f"s_cselect_b32 {sH}, {sH}, {sHb}"] if (qb == 0 and j) else []
        return Item(su, lambda: g.vmem(f"buffer_load_dwordx4 {HB(j, qb)}, {vh[qb]}, {R.srdWS}, {sH} offen sc1", ("H", j)))
    h_alt = lambda j, qb: (clo(h_item(j, qb).setup), h_item(j, qb).fn)

    def poll_h():
        g.wait_vm(lambda t: t == ("POLL",))
        g(f"v_readfirstlane_b32 {R.stmp}, {vpoll}")
        g("s_nop 0")
        g(f"s_cmp_ge_u32 {R.stmp}, 8")
        g("s_cbranch_scc0 L_spin_h")
        g.label("L_h_ok")
    xt = {}
    slots = [(gp, w) for gp in range(16) for w in (0, 3, 4) if (gp, w) != (cfg.BAR, 0) and (w != 4 or gp in cfg.ones_groups)]
    slots = sorted(slots + [(gp, 4) for gp in cfg.ones_groups] * 2 + [(gp, 1) for gp in (11, 12)] * 2)
    if opt.hybrid:
        slots = [(gp, w) for gp in range(16) for w in (0, 2, 3) if (gp, w) not in ((cfg.BAR, 0), (cfg.BAR - 1, 2), (15, 2), (15, 3), (cfg.hyb_groups[0], 0), (14, 0))]
        slots = sorted(slots + [(8, 1), (9, 1)])
    for qb in range(4):
        sc += [f"s_add_u32 {R.stmp}, {R.swave}, {qb}", f"s_and_b32 {R.stmp}, {R.stmp}, 3", f"s_lshl_b32 {R.stmp}, {R.stmp}, 10",
               f"v_add_u32 {vh[qb]}, {R.stmp}, {voff16}"]
    assert len(sc) < len(slots)
    for j, s_ in enumerate(sc):
        xt.setdefault(slots[j], []).append(lambda s_=s_: g(s_))
    xt.setdefault((15, 2), []).append(poll_h)
    S0 = 2 + 8 * NIT
    at.emit_step(g, R, cfg, S0, xtra=xt)
    def h_lds(j, qb):
        su = h_item(j, qb).setup + [f"s_add_u32 m0, {R.swoff}, {(j-JL)*U+qb*1024}"]
        return (clo(su), lambda: g.vmem(f"buffer_load_dwordx4 {vh[qb]}, {R.srdWS}, {sH} offen sc1 lds", ("HL", j)))
    hq = [(h_lds if j in (JL, JL + 1) else h_alt)(j, qb) for j in range(10) for qb in range(4)]
    if opt.touch:
        tw = [f"s_and_b32 {R.stmp}, {R.sp}, {(32 >> hb) - 1}", f"s_mul_i32 {R.stmp}, {R.stmp}, {(14 << hb) * 1024}", f"s_add_u32 {R.stmp}, {R.stmp}, {sDb}",
              f"v_lshrrev_b32 {tmp[0]}, 1, {lane}", f"v_and_b32 {tmp[1]}, 1, {lane}", f"v_lshlrev_b32 {tmp[1]}, 6, {tmp[1]}", f"v_lshl_add_u32 {tmp[0]}, {tmp[0]}, 10, {tmp[1]}"]
        hq.insert(0, (clo(tw), lambda: g.vmem(f"buffer_load_dword {tmp[1]}, {tmp[0]}, {R.srdWD}, {R.stmp} offen", ("PF",))))
    xres = Reg("v", 224, 8)
    hq += [(clo([f"s_lshl_b32 {R.stmp}, {R.skvh}, 7", f"s_add_u32 {sxo}, {sxo}, {R.stmp}"] if nb == 0 else []),
            lambda nb=nb: g.vmem(f"buffer_load_dwordx2 {xres[2*nb:2*nb+2]}, {voffx}, {R.srdX}, {sxo} offen offset:{nb*32}", ("X", 99))) for nb in range(4)]
    steps = list(range(S0 + 1, 63))
    for i in steps:
        xo = {}
        alt, ag = [], []
        if i in (59, 61):
            alt, ag = od_piece(i - 59).alt(g, R) + od_piece(i - 58).alt(g, R), list(cfg.dma_groups)
        if i == 62:
            alt, ag = od_piece(4).alt(g, R), [8, 9, 10, 11]
        n = opt.h_plan[i - 51]
        for gp in cfg.og(i):
            if n:
                su, op = hq.pop(0)
                free = [(gp - 1, 0), (gp, 0), (gp - 1, 3), (gp, 3), (gp, 2)] if i % 2 == 0 or gp < 5 else [(gp - 1, 0), (gp - 1, 2), (gp, 2)]
                free = sorted(free[:max(len(su), 1)])
                for j_, f_ in enumerate(su):
                    xo.setdefault(free[min(j_, len(free) - 1)], []).append(f_)
                xo.setdefault((gp, 4), []).append(op)
                n -= 1
        while n:
            assert i % 2 == 0
            alt.append(hq.pop(0))
            ag.append([gp for gp in (8, 9, 10, 11, 12, 7, 6, 5) if gp not in ag][0])
            n -= 1
        if opt.tail_stamps and i % 2 == 0:
            keep = list(g.lgkm)
            stamp(k, R, f"s{i}")
            g.lgkm = keep
        assert ag == sorted(ag)
        vl = clo(reduce_G_ops(R.lv, [tmp[2], tmp[3]], "v_add_f32")) if (opt.hybrid and i == 54) else None
        at.emit_step(g, R, cfg, i, alt=alt, alt_groups=ag, xtra=xo, valu=vl)
        assert not vl
    if opt.tail_stamps:
        keep = list(g.lgkm)
        stamp(k, R, "s63")
        g.lgkm = keep
    assert not hq
    hs = [(j, qb) for j in range(10, 14) for qb in range(4)]
    lastbuf = lambda db: at.fbuf(R, 8 + db)
    rd_over = {gp: [] for gp in range(5, 16)}
    x63 = {(0, 0): [lambda: g.wait_vm(lambda t: t[0] == "HL")], (4, 0): [lambda: g(f"v_add_u32 {vpoll}, {R.swoff}, {voff16}")]}
    for db, (gp, w_) in enumerate([(1, 4), (3, 4), (5, 1), (5, 4), (6, 1), (7, 1), (7, 4), (8, 1)]):
        ops = at.read_ops(g, R, cfg, 1024 + db, lastbuf(db))
        if w_ == 4:
            x63[(gp, 4)] = ops
        else:
            rd_over[gp] += ops
    h_back = lambda j, qb: g.ds(f"ds_read_b128 {HB(j, qb)}, {vpoll} offset:{(j-JL)*U+qb*1024}", ("HB", j))
    for qb in range(4):
        rd_over[12 + qb // 2].append(lambda qb=qb: h_back(JL, qb))
    mf_over = {}
    order = [(0, 0), (1, 0), (0, 1), (1, 1), (2, 0), (2, 1), (3, 0), (3, 1)]
    for gi, (qb, dh) in enumerate(order):
        for w4 in range(4):
            db = 4 * dh + w4
            mf_over[32 + 4 * gi + w4] = (1024 + db, f"{MF} {R.O[db][qb]}, {lastbuf(db)}, {R.S[1][qb][0:4]}, {R.O[db][qb]}")
    ones_over = {gp: at.ones_mfma(R, 62, q_, False) for q_, gp in enumerate(cfg.ones_groups)}
    ones_over.update({9 + q_: at.ones_mfma(R, 63, q_, False) for q_ in range(3)})
    RL = [R.negm[qb][0:2] for qb in range(4)]
    vv = [f"s_lshl_b32 {R.stmp}, {R.swave}, 2", f"s_add_u32 {R.stmp}, {R.stmp}, {7*U}", f"v_lshl_add_u32 {R.negm[0][2]}, {lane}, 12, {R.stmp}"]
    if opt.hybrid:
        vv += [f"v_add_f32 {R.lv[0]}, {R.lv[0]}, {R.l[0]}", f"v_add_f32 {R.lv[1]}, {R.lv[1]}, {R.l[2]}"]
        R.l = [R.lv[0], R.l[1], R.lv[1], R.l[3]]
    vv += [f"v_add_f32 {R.negm[1][2]}, {R.l[0]}, {R.l[1]}", f"v_add_f32 {R.negm[2][2]}, {R.l[2]}, {R.l[3]}", f"v_add_f32 {R.negm[1][2]}, {R.negm[1][2]}, {R.negm[2][2]}"]
    vv += [f"v_cmp_nge_f32 vcc, {fbits(L_LIMIT if not opt.force_slow else -1.0)}, {R.negm[1][2]}"]
    vcl = clo(vv)
    nh = opt.h63
    h63 = [h_alt(*x) for x in hs[:nh]]
    x14 = {}
    for gp, w_ in [(8, 3), (9, 4), (10, 3), (10, 4), (11, 3), (11, 4), (14, 0), (14, 2)]:
        if h63:
            su, op = h63.pop(0)
            if gp == 14:
                x14[(14, w_)] = su + [op]
            elif w_ == 4:
                assert not (su and (gp, 3) in x63)
                x63.setdefault((gp, 2), []).extend(su)
                x63[(gp, 4)] = [op]
            else:
                x63[(gp, 3)] = (su, op)
    assert not h63
    ag = [gp for gp in range(16) if (gp, 3) in x63]
    al = [x63.pop((gp, 3)) for gp in ag]
    at.emit_step(g, R, cfg, 63, groups=range(14), alt=al, alt_groups=ag, xtra=x63, mf_over=mf_over, rd_over=rd_over, ones_over=ones_over)
    assert not R.pend
    g("s_nop 1")
    g(at.ones_mfma(R, 63, 3, False))
    at.emit_step(g, R, cfg, 63, groups=[14], xtra=x14, mf_over=mf_over, rd_over={14: [(lambda qb=qb: h_back(JL + 1, qb)) for qb in range(4)]}, ones_over={})
    at.emit_step(g, R, cfg, 63, groups=[15], mf_over=mf_over, rd_over=rd_over, ones_over={}, valu=vcl)
    for f in vcl:
        f()
    for qb in range(4):
        g(f"v_rcp_f32 {RL[qb][0]}, {R.l[qb]}")
    g(f"s_cmp_lg_u64 vcc, 0")
    g(f"s_cselect_b32 {R.stmp}, 1, 0")
    g(f"s_andn2_b32 {R.stmp}, {R.stmp}, {sslow}")
    g(f"v_mov_b32 {R.negm[1][2]}, {R.stmp}")
    g("s_mov_b64 exec, 15")
    g.ds(f"ds_write_b32 {R.negm[0][2]}, {R.negm[1][2]}", ("ST",))
    g("s_mov_b64 exec, -1")
    for qb in range(4):
        g(f"v_mov_b32 {RL[qb][1]}, {RL[qb][0]}")
    g(f"s_lshl_b32 {R.stmp2}, {R.swave}, 2")
    g(f"s_sub_u32 {R.stmp2}, {R.stmp2}, {srot}")

    def barrier_a():
        g.wait_lgkm(lambda t: t[0] in ("HB", "F"))
        g("s_barrier")
        stamp(k, R, "attn")
    if not opt.trim:
        barrier_a()

    def o_mul(u, qb):
        for b in range(2):
            O = R.O[2 * u + b][qb]
            g(f"v_pk_mul_f32 {O[0:2]}, {O[0:2]}, {RL[qb]}")
            g(f"v_pk_mul_f32 {O[2:4]}, {O[2:4]}, {RL[qb]}")

    def o_cvt(u, qb):
        O0, O1 = R.O[2 * u][qb], R.O[2 * u + 1][qb]
        g(f"v_cvt_pk_bf16_f32 {O0[0]}, {O0[0]}, {O0[1]}")
        g(f"v_cvt_pk_bf16_f32 {O0[1]}, {O0[2]}, {O0[3]}")
        g(f"v_cvt_pk_bf16_f32 {O0[2]}, {O1[0]}, {O1[1]}")
        g(f"v_cvt_pk_bf16_f32 {O0[3]}, {O1[2]}, {O1[3]}")
    vq = [h_item(*x) for x in hs[nh:]]
    for u in range(4):
        g(f"s_and_b32 {R.stmp}, {R.stmp2}, 15")
        g(f"s_lshl_b32 {R.stmp}, {R.stmp}, 12")
        g(f"v_add_u32 {lq[u]}, {R.stmp}, {voff16}")
        g(f"s_add_u32 {R.stmp2}, {R.stmp2}, 1")
    prev = None
    for qb in range(4):
        for u in range(4):
            if vq and u & 1:
                it = vq.pop(0)
                emit(it.setup)
                it.fn()
            o_mul(u, qb)
            if opt.trim and (qb, u) == (0, 1):
                barrier_a()
            if prev and opt.wr_delay:
                g.ds(prev, ("W",))
            o_cvt(u, qb)
            prev = f"ds_write_b128 {lq[u]}, {R.O[2*u][qb]} offset:{qb*1024}"
            if not opt.wr_delay or (qb, u) == (3, 3):
                g.ds(prev, ("W",))
            if len(g.lgkm) >= 14:
                g("s_waitcnt lgkmcnt(8)")
                g.lgkm = g.lgkm[-8:]
    assert not vq
    g(f"s_add_u32 {R.stmp}, {R.swoff}, {7*U}")
    g(f"v_mov_b32 {vpoll}, {R.stmp}")
    ST = Reg("v", 64, 4)

    def obread(h, qb):
        return (("B", h, qb), f"ds_read_b128 {BF[((h&1)*4+qb)*4:((h&1)*4+qb)*4+4]}, {voff16} offset:{((h&15)*4+qb)*1024}")
    P = []
    for h in range(46):
        if h < 32:
            P.append(PSpec(RING_OD[h % 6], ("WO", h), trS, True,
                           (lambda nb, qb, h=h: (ACC(4 * (h >> 4) + nb, qb), (h & 15) == 0)),
                           (lambda qb, h=h: (BF[((h & 1) * 4 + qb) * 4:((h & 1) * 4 + qb) * 4 + 4], ("B", h, qb))),
                           [obread(h + 1, qb) for qb in range(4)] if h < 31 else []))
        else:
            P.append(PSpec(RING_OD[h % 6], ("WO", h), trS, True,
                           (lambda nb, qb, h=h: (DACC(nb, qb), h == 32)),
                           (lambda qb, h=h: (HB(h - 32, qb), None))))
    fills = []

    def p_store(s, i):
        qb, u = divmod(i, 2)
        A_ = ACC(4 * s + 2 * u, qb)
        o = ((qb & 1) * 2 + u) * 1024
        off = f" offset:{o}" if o else ""
        su = [f"s_add_u32 {sSP}, {sSP}, 4096"] if i == 4 else [f"s_sub_u32 {sSP}, {sSP}, 4096", f"s_xor_b32 {sSP}, {sSP}, 65536"] if (i == 0 and s) else []
        if opt.diag_st == "none":
            return Item(su, lambda: g("s_nop 0"))
        return Item(su, lambda: g.vmem(f"buffer_store_dwordx4 {A_}, {voff16}, {R.srdWS}, {sSP} offen{off}{opt.diag_st}", ("SS",)))

    def p_cvt(s, i, e, l):
        qb, u = divmod(i, 2)
        A_, B_ = ACC(4 * s + 2 * u, qb), ACC(4 * s + 2 * u + 1, qb)
        for s_ in [f"v_cvt_pk_bf16_f32 {A_[0]}, {A_[0]}, {A_[1]}", f"v_cvt_pk_bf16_f32 {A_[1]}, {A_[2]}, {A_[3]}",
                   f"v_cvt_pk_bf16_f32 {A_[2]}, {B_[0]}, {B_[1]}", f"v_cvt_pk_bf16_f32 {A_[3]}, {B_[2]}, {B_[3]}"]:
            fills.append((e, l, lambda s_=s_: g(s_)))
    ins = {}
    w1 = {}
    w2 = {}
    q = [it for h in range(5, 46) for it in od_piece(h).items(g, R)]
    poll_item = Item([], lambda: g.vmem(f"buffer_load_dword {vpoll}, {tm2[0]}, {R.srdWS}, {spl} offen sc1", ("POLL",)))
    if opt.st_late:
        g0 = len(q)
        ins[g0] = poll_item
        n0 = 16 - opt.st_late
        for i in range(n0):
            gp = opt.st1_group + opt.st1_step * i
            w1[gp] = p_store(0, i)
            p_cvt(0, i, 64 * 4 + 2, 4 * gp + 1)
        for j in range(n0, 16):
            gp = g0 + 1 + j - n0
            ins[gp] = p_store(j // 8, j % 8)
            p_cvt(j // 8, j % 8, (64 << (j // 8)) * 4 + 2, 4 * gp + 2)
    else:
        for i in range(8):
            gp = opt.st1_group + opt.st1_step * i
            w1[gp] = p_store(0, i)
            p_cvt(0, i, 64 * 4 + 2, 4 * gp + 1)
        for i in range(8):
            gp = 128 + 1 + opt.st2_step * i
            (ins if opt.d_fifo else w1)[gp] = p_store(1, i)
            p_cvt(1, i, 128 * 4 + 2, 4 * gp + (2 if opt.d_fifo else 1))
    gp, nx, nxt = 0, 0, 1
    while q or ins:
        if nx and gp >= nxt and gp % 2 and not q[1].setup:
            w1[gp] = q.pop(0)
            nx, nxt = nx - 1, nxt + opt.o_catch
        w2[gp] = ins.pop(gp) if gp in ins else q.pop(0)
        gp += 1
    flag_group = opt.flag_group
    early_poll = not opt.st_late
    sp = Reg("v", 0, 64) if early_poll else Reg("a", 128, 64)
    smask, soob, snew = sO, sHb, sDl

    def sp_item(src, u, dst=None):
        su = [f"s_bitcmp1_b32 {smask}, {src}", f"s_cselect_b32 {R.stmp2}, {sSL}, {soob}", f"s_add_u32 {sSL}, {sSL}, 8192"] if u == 0 else []
        off = f" offset:{u*1024}" if u else ""
        return Item(su, lambda: g.vmem(f"buffer_load_dwordx4 {spv[src*8+u*4:src*8+u*4+4]}, {voff16}, {R.srdWS}, {R.stmp2} offen{off} sc1", ("SP", src)))
    spv = Reg("v", 0, 64)

    def look():
        g.wait_vm(lambda t: t == ("POLL",))
        g(f"v_cmp_eq_u32 vcc, 1, {vpoll}")
        g(f"s_lshl_b32 {smask}, 1, {R.skvh}")
        g(f"s_mov_b32 {soob}, {256 << 20}")
        if early_poll:
            g(f"s_or_b32 {smask}, {smask}, vcc_lo")
        else:
            g(f"s_andn2_b32 {smask}, vcc_lo, {smask}")
        g(f"s_and_b32 {smask}, {smask}, 255")
    if early_poll:
        (w2 if opt.poll_group >= gp else w1)[opt.poll_group] = poll_item
        assert opt.look_group + 1 >= gp and opt.look_group > flag_group + 1
        if opt.sp_in:
            ng = 183 - opt.look_group
            two = opt.sp_n - ng
            sl = []
            for j in range(ng):
                if j >= ng - two:
                    sl.append((opt.look_group + 1 + j, 0))
                sl.append((opt.look_group + 1 + j, 1))
            assert len(sl) == opt.sp_n
            for j, (gp_, w_) in enumerate(sl):
                it = sp_item(j // 2, j % 2)
                assert not (w_ and gp_ in w1 and it.setup)
                (w2 if w_ else w1)[gp_] = it

    def set_flag():
        stamp(k, R, "preflag")
        g.wait_vm(lambda t: t == ("SS",))
        g(f"v_mov_b32 {vpoll}, 1")
        g("s_mov_b64 exec, 1")
        g.vmem(f"buffer_store_dword {vpoll}, off, {R.srdWS}, {sfl} sc1", ("FL",))
        g("s_mov_b64 exec, -1")
        stamp(k, R, "acked")
    post = [f"s_lshl_b32 {spl}, {R.sp}, 2", f"s_lshr_b32 {R.stmp}, {R.skvh}, 1", f"s_add_u32 {spl}, {spl}, {R.stmp}",
            f"s_lshl_b32 {spl}, {spl}, 5", f"s_add_u32 {spl}, {spl}, {FL_BASE}",
            f"v_and_b32 {tm2[0]}, 7, {lane}", f"v_lshlrev_b32 {tm2[0]}, 2, {tm2[0]}",
            f"s_lshl_b32 {sSL}, {R.sp}, 3", f"s_add_u32 {sSL}, {sSL}, {R.skvh}", f"s_lshl_b32 {sSL}, {sSL}, 16",
            f"s_lshl_b32 {R.stmp}, {R.swave}, 11", f"s_add_u32 {sSL}, {sSL}, {R.stmp}", f"s_add_u32 {sSL}, {sSL}, {SP_BASE}"]
    for qb in range(1, 4):
        post += [f"s_add_u32 {R.stmp}, {R.swave}, {qb}", f"s_and_b32 {R.stmp}, {R.stmp}, 3", f"s_lshl_b32 {R.stmp}, {R.stmp}, 14",
                 f"v_add_u32 {tm2[qb]}, {R.stmp}, {voff16}"]
    fw = 4 * flag_group + 1
    IDF = Reg("a", 72, 6)
    if opt.mfma_sum:
        t0_, t1_, t2_, t3_ = [f"v{64+j}" for j in range(4, 8)]
        post += [f"v_bfe_u32 {t0_}, {lane}, 2, 2", f"v_lshrrev_b32 {t1_}, 4, {lane}", f"v_cmp_eq_u32 vcc, {t0_}, {t1_}",
                 f"v_and_b32 {t0_}, 1, {lane}", f"v_lshlrev_b32 {t0_}, 4, {t0_}", f"v_mov_b32 {t1_}, 0x3f80", f"v_lshlrev_b32 {t1_}, {t0_}, {t1_}",
                 f"v_cndmask_b32 {t1_}, 0, {t1_}, vcc", f"v_and_b32 {t0_}, 2, {lane}", f"v_cmp_eq_u32 vcc, 0, {t0_}", f"v_accvgpr_write_b32 {IDF[0]}, 0",
                 f"v_accvgpr_write_b32 {IDF[1]}, 0", f"v_cndmask_b32 {t2_}, 0, {t1_}, vcc", f"v_cndmask_b32 {t3_}, {t1_}, 0, vcc",
                 f"v_accvgpr_write_b32 {IDF[4]}, 0", f"v_accvgpr_write_b32 {IDF[5]}, 0", f"v_accvgpr_write_b32 {IDF[2]}, {t2_}", f"v_accvgpr_write_b32 {IDF[3]}, {t3_}"]
    fills = [(8, 250, lambda s_=s_: g(s_)) for s_ in post] + fills

    XR = Reg("v", 112, 16)
    for d in range(8):
        fills.append((4 * (flag_group + 2), 10 ** 9, lambda d=d: g(f"v_lshlrev_b32 {XR[2*d]}, 16, {xres[d]}")))
        fills.append((4 * (flag_group + 2), 10 ** 9, lambda d=d: g(f"v_and_b32 {XR[2*d+1]}, 0xffff0000, {xres[d]}")))

    def red_write(nb, qb):
        g.ds(f"ds_write_b128 {tm2[qb]}, {DACC(nb, qb)} offset:{(qb*4+nb)*1024}", ("W",))
        return 2
    for nb in range(2):
        for qb in range(1, 4):
            fills.append((45 * 16 + 4 * nb + qb + 7, 10 ** 9, lambda nb=nb, qb=qb: red_write(nb, qb)))
    ex = {fw: [set_flag] if early_poll else [], 4 * opt.look_group + 2: [look], fw + 6: [lambda: g("s_barrier")],
          4 * 127 + 3: [lambda: g.wait_vm(lambda t: t[0] == "H")]}
    if opt.stamps:
        ex.setdefault(16 * 16 - 1, []).append(lambda: stamp(k, R, "o1"))
        ex.setdefault(32 * 16 - 1, []).append(lambda: stamp(k, R, "o2"))
        for h_ in opt.od_stamps:
            ex.setdefault(h_ * 16 - 1, []).append(lambda h_=h_: stamp(k, R, f"d{h_}"))
    if opt.trim:
        lead_reads(k, P, AF)
    g.wait_lgkm(lambda t: t[0] in ("W", "ST"))
    g("s_barrier")
    stamp(k, R, "oepi")
    g.ds(f"ds_read_b128 {ST}, {vpoll}", ("ST",))
    for qb in range(4):
        tg, txt = obread(0, qb)
        g.ds(txt, tg)

    def range_check():
        g.wait_lgkm(lambda t: t == ("ST",))
        g(f"v_or_b32 {ST[0]}, {ST[0]}, {ST[1]}")
        g(f"v_or3_b32 {ST[0]}, {ST[0]}, {ST[2]}, {ST[3]}")
        g("s_nop 0")
        g(f"v_readfirstlane_b32 {R.stmp}, {ST[0]}")
        g("s_nop 0")
        g(f"s_cmp_lg_u32 {R.stmp}, 0")
        g("s_cbranch_scc1 L_slow")
    rest = stream(k, R, P, AF, w2, w1, fills, ex, pre=range_check, led=opt.trim)
    stamp(k, R, "down")
    for _, _, f in rest:
        f()
    g("s_nop 2")
    for nb in range(2, 4):
        for qb in range(1, 4):
            red_write(nb, qb)

    if not (early_poll and opt.sp_in):
        for src in range(8):
            for u in range(2):
                it = sp_item(src, u)
                emit(it.setup)
                it.fn()
    stamp(k, R, "polled")
    SUM = Reg("v", 96 if opt.mfma_sum else 176, 16)

    def sum_mfmas():
        o = []
        for src in range(8):
            for u in range(2):
                for t_ in range(2):
                    D_ = SUM[4 * (2 * u + t_):4 * (2 * u + t_) + 4]
                    o.append((src, f"{MF} {D_}, {IDF[2-2*t_:6-2*t_]}, {spv[src*8+u*4:src*8+u*4+4]}, {D_ if src else '0'}"))
        return o
    g(f"v_lshl_add_u32 {tm2[1]}, {R.swoff}, 2, {voff16}")
    for src, txt in sum_mfmas()[:opt.sum_early]:
        g.wait_vm(lambda t: t == ("SP", src))
        g(txt)
    g.wait_lgkm0()
    g("s_barrier")
    for qb in range(1, 4):
        for nb in range(4):
            g.ds(f"ds_read_b128 {DACC(nb, qb)}, {tm2[1]} offset:{(qb*4+nb)*1024}", ("R", qb))
    if opt.sp_in:
        for j in range(opt.sp_n, 16):
            it = sp_item(j // 2, j % 2)
            emit(it.setup)
            it.fn()
    if opt.poll2:
        poll_item.fn()
    for src, txt in sum_mfmas()[opt.sum_early:opt.sum_early + opt.sum_mid]:
        g.wait_vm(lambda t: t == ("SP", src))
        g(txt)
    Bv = [Reg("v", 160 + j) for j in range(16)]
    E = [Reg("v", 176 + j) for j in range(16)]
    T = [Reg("v", 128 + j) for j in range(32)]
    if not early_poll:
        set_flag()
        g("s_barrier")
        g(f"s_sub_u32 {R.stmp}, {R.skvh}, 8")
        g(f"s_lshl_b32 {R.stmp}, {R.stmp}, 13")
        g(f"s_add_u32 {R.stmp}, {R.stmp}, {sSL}")
        for u in range(2):
            g.vmem(f"buffer_load_dwordx4 v[{64+4*u}:{67+4*u}], {voff16}, {R.srdWS}, {R.stmp} offen offset:{u*1024} sc1", ("SP", 8))
        g(f"s_bitset1_b32 {smask}, {R.skvh}")
    g(f"s_mov_b32 {R.stmp2}, {fbits(-1.4426950408889634 / (C_SCALE * C_SCALE))}")
    g(f"s_mov_b32 {R.stmp}, {fbits(C_SCALE * C_SCALE)}")
    for qb in range(1, 4):
        g.wait_lgkm(lambda t: t[1] <= qb)
        for j in range(0, 16, 2):
            g(f"v_pk_add_f32 v[{160+j}:{161+j}], v[{160+j}:{161+j}], v[{160+16*qb+j}:{161+16*qb+j}]")
    act = [f"v_mul_f32 {E[j]}, {R.stmp2}, {Bv[j]}" for j in range(16)] + [f"v_exp_f32 {E[j]}, {E[j]}" for j in range(16)]
    act += [f"v_fma_f32 {E[j]}, {E[j]}, {R.stmp}, {R.stmp}" for j in range(16)]
    act += [f"v_rcp_f32 {E[j]}, {E[j]}" for j in range(16)]
    if opt.mfma_sum:
        act += [f"v_mul_f32 {Bv[j]}, {Bv[j]}, {E[j]}" for j in range(16)]
        rest_m = sum_mfmas()[opt.sum_early + opt.sum_mid:]
        for j, (src, txt) in enumerate(rest_m):
            g.wait_vm(lambda t: t == ("SP", src))
            g(txt)
            for _ in range(-(-len(act) // (len(rest_m) - j))):
                g(act.pop(0))
        emit(act)
    else:
        emit(act)
        g("s_nop 0")
        for j in range(0, 16, 2):
            g(f"v_pk_mul_f32 v[{160+j}:{161+j}], v[{160+j}:{161+j}], v[{176+j}:{177+j}]")
    stamp(k, R, "silu")

    def accumulate(base, first):
        for d in range(8):
            r = f"v{base+d}"
            if first:
                g(f"v_lshlrev_b32 {E[2*d]}, 16, {r}")
                g(f"v_and_b32 {E[2*d+1]}, 0xffff0000, {r}")
            else:
                g(f"v_lshlrev_b32 {T[16+2*d]}, 16, {r}")
                g(f"v_and_b32 {T[17+2*d]}, 0xffff0000, {r}")
                g(f"v_pk_add_f32 v[{176+2*d}:{177+2*d}], v[{176+2*d}:{177+2*d}], v[{144+2*d}:{145+2*d}]")
    assert early_poll
    g(f"s_mov_b32 {spin}, 0")
    g(f"s_cmp_lg_u32 {smask}, 255")
    g("s_cbranch_scc1 L_spin_s0" if opt.poll2 else "s_cbranch_scc1 L_spin_s")
    g.label("L_s_ok")
    stamp(k, R, "sok")
    if opt.mfma_sum:
        g("s_nop 1")
    else:
        for src in range(8):
            g.wait_vm(lambda t: t == ("SP", src))
            accumulate(8 * src, src == 0)
    if opt.out_x4:
        g(f"v_lshrrev_b32 {tm2[1]}, 4, {lane}")
        g(f"v_lshl_add_u32 {tm2[1]}, {tm2[1]}, 3, {voffx}")
    for nb in range(4):
        for j in range(4 * nb, 4 * nb + 4, 2):
            g(f"v_pk_fma_f32 v[{160+j}:{161+j}], v[{160+j}:{161+j}], {SUM[j:j+2]}, {XR[j:j+2]}")
        o_ = 128 + (2 * nb if opt.out_x4 else 4 * nb)
        g(f"v_cvt_pk_bf16_f32 v{o_}, {Bv[4*nb]}, {Bv[4*nb+1]}")
        g(f"v_cvt_pk_bf16_f32 v{o_+1}, {Bv[4*nb+2]}, {Bv[4*nb+3]}")
        if not opt.out_x4:
            g.vmem(f"buffer_store_dwordx2 v[{o_}:{o_+1}], {voffx}, {R.srdOUT}, {sxo} offen offset:{nb*32}{opt.out_mod}", ("OUT",))
    if opt.out_x4:
        g("s_nop 0")
        for sw in ("v_permlane32_swap_b32", "v_permlane16_swap_b32"):
            for u in range(2):
                for j in range(2):
                    g(f"{sw} v{128+4*u+j}, v{130+4*u+j}")
        for u in range(2):
            g.vmem(f"buffer_store_dwordx4 v[{128+4*u}:{131+4*u}], {tm2[1]}, {R.srdOUT}, {sxo} offen offset:{u*64}{opt.out_mod}", ("OUT",))
    stamp(k, R, "final")
    if opt.echo:
        a_, b_2, k_ = opt.echo
        g("s_nop 3")
        g(f"v_readlane_b32 {R.stmp}, v255, {k.names.index(a_)}")
        g(f"v_readlane_b32 {R.stmp2}, v255, {k.names.index(b_2)}")
        g(f"s_memrealtime {R.st2}")
        g("s_nop 3")
        g(f"s_sub_u32 {R.stmp}, {R.stmp2}, {R.stmp}")
        g(f"s_mul_i32 {R.stmp}, {R.stmp}, {k_}")
        g(f"s_min_u32 {R.stmp}, {R.stmp}, 100000")
        g("s_waitcnt lgkmcnt(0)")
        g.label("L_echo")
        g(f"s_memrealtime {R.st}")
        g("s_waitcnt lgkmcnt(0)")
        g(f"s_sub_u32 {R.stmp2}, {R.st[0]}, {R.st2[0]}")
        g(f"s_cmp_lt_u32 {R.stmp2}, {R.stmp}")
        g("s_cbranch_scc1 L_echo")
    if opt.dbgstamps:
        g("s_nop 3")
        for j, nm in enumerate(["start"] + list(opt.dbgstamps)):
            g(f"v_readlane_b32 {R.stmp}, v255, {k.names.index(nm)}")
            g("s_nop 3")
            if j == 0:
                g(f"s_not_b32 {R.stmp}, {R.stmp}")
            g(f"v_mov_b32 {tm2[0]}, {R.stmp}")
            g("s_mov_b64 exec, 1")
            g(f"buffer_atomic_umax {tm2[0]}, off, {R.srdDBG}, 0 offset:{4*j} sc1")
            g("s_mov_b64 exec, -1")
        g(f"s_getreg_b32 {R.stmp}, hwreg(HW_REG_XCC_ID, 0, 4)")
        g(f"s_and_b32 {R.stmp2}, s2, 7")
        g(f"s_lshl_b32 {R.stmp2}, {R.stmp2}, 2")
        g(f"s_lshl_b32 {R.stmp}, 1, {R.stmp}")
        g(f"s_cmp_eq_u32 {R.stmp2}, 0")
        g(f"s_cselect_b32 {R.stmp}, {R.stmp}, 0")
        g(f"v_mov_b32 {tm2[0]}, {R.stmp}")
        g("s_mov_b64 exec, 1")
        g(f"buffer_atomic_or {tm2[0]}, off, {R.srdDBG}, 0 offset:60 sc1")
        g("s_mov_b64 exec, -1")
    if opt.stamps:
        g(f"v_lshlrev_b32 {tm2[0]}, 3, {lane}")
        g(f"s_mov_b64 exec, 0xffffffff")
        g(f"buffer_store_dwordx2 v[254:255], {tm2[0]}, {R.srdWS}, {sst} offen")
    g("s_endpgm")

    g.label("L_skipG")
    g("s_waitcnt lgkmcnt(0)")
    g("s_barrier")
    g.lgkm = []
    g.vm = []
    for ks in range(16):
        for qb in range(4):
            tg, txt = bread(ks, qb)
            g.ds(txt, tg)
        if ks % 2 == 1:
            g.wait_lgkm0()
    for h in range(32 + opt.nfill, 37):
        gq_piece(h).emit_now(g, R)
    if opt.idle_pf:
        g(f"s_cmp_lg_u32 {sslow}, 0")
        g("s_cbranch_scc1 L_nopf")
        g(f"s_load_dwordx4 {R.srdOUT}, s[0:1], 8")
        g(f"s_lshl_b32 {R.stmp}, {R.sp}, 2")
        g(f"s_add_u32 {R.stmp}, {R.stmp}, {R.swave}")
        g(f"s_lshl_b32 {R.stmp2}, {R.stmp}, 15")
        for j in range(32):
            g(f"buffer_load_dwordx4 v[{4*(j%16)}:{4*(j%16)+3}], {voff16}, {R.srdWQ}, {R.stmp2} offen")
            g(f"s_add_u32 {R.stmp2}, {R.stmp2}, 1024")
        g(f"s_lshr_b32 {R.stmp2}, {R.stmp}, 4")
        g(f"s_lshl_b32 {R.stmp2}, {R.stmp2}, 19")
        g(f"s_and_b32 {R.stmp}, {R.stmp}, 15")
        g(f"s_lshl_b32 {R.stmp}, {R.stmp}, 12")
        g(f"s_add_u32 {R.stmp2}, {R.stmp2}, {R.stmp}")
        g(f"v_add_u32 {tmp[0]}, {R.stmp2}, {voff16}")
        g("s_waitcnt lgkmcnt(0)")
        for m_ in range(2):
            for j in range(4):
                g(f"global_load_dwordx4 v[{64+4*(4*m_+j)}:{67+4*(4*m_+j)}], {tmp[0]}, {R.srdOUT[2*m_:2*m_+2]} offset:{j*1024}")
        prev = 0
        for blk in opt.idle_more:
            g(f"v_add_u32 {tmp[0]}, {(blk - prev) * 65536}, {tmp[0]}")
            prev = blk
            for m_ in range(2):
                for j in range(4):
                    g(f"global_load_dwordx4 v[{64+4*(4*m_+j)}:{67+4*(4*m_+j)}], {tmp[0]}, {R.srdOUT[2*m_:2*m_+2]} offset:{j*1024}")
        if opt.idle_wo:
            g(f"s_lshl_b32 {R.stmp}, {R.sp}, 2")
            g(f"s_add_u32 {R.stmp}, {R.stmp}, {R.swave}")
            g(f"s_mul_i32 {R.stmp2}, {R.stmp}, {14*1024}")
            for j in range(14):
                g(f"buffer_load_dwordx4 v[{4*(j%16)}:{4*(j%16)+3}], {voff16}, {R.srdWD}, {R.stmp2} offen")
                g(f"s_add_u32 {R.stmp2}, {R.stmp2}, 1024")
        srd(g, R.srdOUT, sout, 2 << 20)
        g.label("L_nopf")
    g("s_waitcnt vmcnt(0)")
    PQ = [PSpec(RING_GQ[h % 6], None, trN, False, None, None) for h in range(34)]
    for n in range(128, 128 + opt.lead):
        a_reads(g, PQ, AF, n)
    g.wait_lgkm0()
    g("s_branch L_Q")
    if opt.ticket:
        g.label("L_overflow")
        g(f"s_mov_b32 {spin}, 0")
        g.label("L_overflow1")
        g(f"s_add_u32 {sdb}, {sdb}, 1")
        g(f"s_and_b32 {sdb}, {sdb}, 7")
        g(f"s_lshl_b32 {R.stmp}, {sdb}, 5")
        g(f"s_mov_b32 {svid}, 1")
        g(f"s_atomic_add {svid}, {ptr2[4:6]}, {R.stmp} glc")
        g(f"s_add_u32 {spin}, {spin}, 1")
        g("s_waitcnt lgkmcnt(0)")
        g(f"s_cmp_lt_u32 {svid}, 32")
        g("s_cbranch_scc1 L_ticket")
        g(f"s_cmp_lt_u32 {spin}, 8")
        g("s_cbranch_scc1 L_overflow1")
        g(f"s_lshr_b32 {svid}, s2, 3")
        g(f"s_and_b32 {sdb}, s2, 7")
        g("s_branch L_ticket")
    g.label("L_signal")
    g(f"v_mov_b32 {vpoll}, 1")
    g("s_mov_b64 exec, 1")
    g(f"buffer_atomic_add {vpoll}, off, {R.srdDBG}, {sdb} offset:4 sc1")
    g("s_mov_b64 exec, -1")
    g("s_branch L_signalled")
    g.label("L_spin_h")
    g(f"s_mov_b32 {spin}, 0")
    g.label("L_spin_h1")
    g(f"buffer_load_dword {vpoll}, off, {R.srdDBG}, {sdb} offset:4 sc1")
    g(f"s_add_u32 {spin}, {spin}, 1")
    g("s_waitcnt vmcnt(0)")
    g(f"v_readfirstlane_b32 {R.stmp}, {vpoll}")
    g("s_nop 0")
    g(f"s_cmp_ge_u32 {R.stmp}, 8")
    g("s_cbranch_scc1 L_h_ok")
    g(f"s_cmp_lt_u32 {spin}, {SPIN}")
    g("s_cbranch_scc1 L_spin_h1")
    g("s_branch L_h_ok")
    g.label("L_spin_s")
    g(f"buffer_load_dword {vpoll}, {tm2[0]}, {R.srdWS}, {spl} offen sc1")
    g.label("L_spin_s0")
    g(f"s_add_u32 {spin}, {spin}, 1")
    g(f"s_sub_u32 {R.stmp2}, {sSL}, 65536")
    g("s_waitcnt vmcnt(0)")
    g(f"v_cmp_eq_u32 vcc, 1, {vpoll}")
    g(f"s_cmp_lt_u32 {spin}, {SPIN}")
    g(f"s_cselect_b32 {snew}, vcc_lo, -1")
    g(f"s_andn2_b32 {snew}, {snew}, {smask}")
    g(f"s_and_b32 {snew}, {snew}, 255")
    g("s_cbranch_scc0 L_spin_s")
    for src in range(8):
        g(f"s_bitcmp1_b32 {snew}, {src}")
        g(f"s_cbranch_scc0 L_nl{src}")
        for u in range(2):
            g(f"buffer_load_dwordx4 {spv[src*8+u*4:src*8+u*4+4]}, {voff16}, {R.srdWS}, {R.stmp2} offen offset:{u*1024} sc1")
        g.label(f"L_nl{src}")
        g(f"s_add_u32 {R.stmp2}, {R.stmp2}, 8192")
    g(f"s_or_b32 {smask}, {smask}, {snew}")
    g(f"s_cmp_lg_u32 {smask}, 255")
    g("s_cbranch_scc1 L_spin_s")
    g("s_waitcnt vmcnt(0)")
    if opt.mfma_sum:
        emit([txt for _, txt in sum_mfmas()])
        g("s_nop 7")
    g("s_branch L_s_ok")
    g.label("L_slow")
    g(f"s_mov_b32 {sslow}, 1")
    g("s_waitcnt vmcnt(0) lgkmcnt(0)")
    g("s_barrier")
    g("s_branch L_restart")
    g.label("L_maxpass")
    g.vm = []
    g.lgkm = []
    emit(q_epi(3))
    for qb in range(4):
        g(f"v_mov_b32 {mx[qb]}, 0xff800000")
    g(f"s_mov_b32 {R.stile}, 0")
    g("s_waitcnt vmcnt(0) lgkmcnt(0)")

    def qk_plain(i):
        for n in range(8):
            for op in at.read_ops(g, R, cfg, 16 * i + 8 + n):
                op()
        g.wait_lgkm0()
        for w in range(32, 64):
            n, txt = at.mfma_desc(R, cfg, i, w)
            for qb in range(4):
                txt = txt.replace(f", {R.negm[qb]}", ", 0")
            g(txt)
        g("s_nop 7")
    g.label("L_max1")
    g("s_barrier")
    kv_piece("K", 3, setup=False).emit_now(g, R)
    g.wait_vm0()
    g("s_barrier")
    for half in range(2):
        qk_plain(5 + half)
        for qb in range(4):
            Sx = R.S[half][qb]
            for j in range(0, 8, 2):
                g(f"v_max3_f32 {mx[qb]}, {mx[qb]}, {Sx[j]}, {Sx[j+1]}")
    g(f"s_add_u32 {R.stile}, {R.stile}, {U}")
    g(f"s_cmp_lt_u32 {R.stile}, {32*U}")
    g("s_cbranch_scc1 L_max1")
    emit(reduce_G_ops(mx, mt, "v_max_f32"))
    qk_plain(-1)
    for n in range(8, 13):
        for op in at.read_ops(g, R, cfg, n):
            op()
    g.wait_lgkm0()
    g("s_branch L_havemax")
    g.label("L_end")
    g("s_endpgm")
    return k


def gen(opt):
    header = open(f"cdna_kernels/{KN}.s.ref").read().split("; Override launch")[0]
    k = gen_kernel(opt)
    body = k.g.lines
    bad = check_hazards(body)
    lp = body[body.index("L_loop:"):]
    lp = lp[:[j for j, l in enumerate(lp) if "s_cbranch_scc1 L_loop" in l][0]]
    bad += check_hazards(lp + lp)
    n1 = sum(1 for l in body if l.startswith("    ") and not l.strip().startswith(";"))
    print("instrs", n1, "hazards", len(bad))
    assert not bad
    asm = header + DOC
    asm += "; @launch grid=(256,1,1) block=(256,1,1) lds=163840\n"
    asm += '.amdgcn_target "amdgcn-amd-amdhsa--gfx950"\n'
    asm += kernel_header(KN + "_kernel") + k.g.text()
    asm += kernel_footer(KN + "_kernel", 512, 102, 256)
    return asm, k.names


def mk(**kw):
    o = Opt()
    for a, v in kw.items():
        assert hasattr(o, a), a
        setattr(o, a, v)
    return o


if __name__ == "__main__":
    import json
    variants = eval(sys.argv[1]) if len(sys.argv) > 1 else {"v5": {}, "v5_st": dict(stamps=True)}
    for name, kw in variants.items():
        o = mk(**kw)
        asm, n1 = gen(o)
        build(asm, f"dev/{name}", KN + "_kernel")
        if o.stamps:
            json.dump([n1], open(f"dev/{name}.json", "w"))
    print(" ".join(variants))
    print(", ".join(f'"dev/{n}.co"' + (f', "dev/{n}.json"' if variants[n].get("stamps") else "") for n in variants))
```

```python
from asmlib import *
from attn16 import MF, Regs, lane_consts, set_m0, dma_ops, frag_desc, frag_exists


class Cfg:
    G0 = -8
    no_dma = False
    no_barrier = False
    dma_groups = [5, 6, 7, 8, 9, 10, 11, 12]
    KBASE = 98304
    VBASE = 32768
    vslot = [0, 1, 2, 3]
    kslot = [0, 1, 2, 3]
    dma_mod = ""
    stamps = False
    ones = True
    ones_groups = (1, 3, 5, 7)
    kread = {5: [0, 1], 6: [2, 3], 7: [4], 8: [5], 9: [6], 10: [7]}
    BAR = 13
    D = 3
    hyb_range = (0, -1)
    hyb_groups = (3, 7)
    l_groups = (11, 12)
    l_ones = 2
    flag_range = (0, -1)
    dones_range = (0, -1)

    def hyb(self, half):
        return self.hyb_range[0] <= half <= self.hyb_range[1]

    def dones(self, i):
        return self.dones_range[0] <= i <= self.dones_range[1]

    def og(self, i):
        return self.hyb_groups if self.hyb(i - 1) else self.ones_groups


def fbuf(R, n):
    f = n % 16
    return R.vfrag[(f % 4) * 4:(f % 4) * 4 + 4] if f < 8 else R.kfrag[(f - 8) * 4:(f - 8) * 4 + 4]


def read_ops(g, R, cfg, n, buf=None):
    kind, half, idx = frag_desc(n)
    buf = buf or fbuf(R, n)
    tile, hb = divmod(half, 2)
    if kind == "K":
        kb, kk = divmod(idx, 4)
        off = cfg.kslot[tile % 4] * 16384 + hb * 8192 + kb * 1024
        return [lambda: g.ds(f"ds_read_b128 {buf}, {R.kaddr[kk]} offset:{off}", ("F", n))]
    off = cfg.vslot[tile % 4] * 16384 + hb * 8192
    return [lambda: g.ds(f"ds_read_b64_tr_b16 {buf[0:2]}, {R.vaddr[idx]} offset:{off}", ("F", n)),
            lambda: g.ds(f"ds_read_b64_tr_b16 {buf[2:4]}, {R.vaddr[idx]} offset:{off+1024}", ("F", n))]


def group_reads(cfg, i, grp):
    if grp in cfg.kread:
        return [16 * i + 8 + f for f in cfg.kread[grp]]
    if grp <= 4:
        return [16 * i + grp + 3]
    if grp >= 13:
        return [16 * (i + 1) + grp - 13]
    return []


def sm_pair(cfg, i, grp):
    p = grp - cfg.G0 // 4
    half = i + p // 16
    p %= 16
    if cfg.hyb(half):
        return half, 2 * (p // 8) + (p & 1), 2 * ((p % 8) // 2)
    return half, p // 4, 2 * (p % 4)


def mfma_desc(R, cfg, i, w, first_pv=False):
    if w < 32:
        db, qb = divmod(w, 4)
        n = 16 * i + db
        P = R.S[(i - 1) & 1][qb][0:4]
        O = R.O[db][qb]
        return n, f"{MF} {O}, {fbuf(R, n)}, {P}, {'0' if first_pv else O}"
    w -= 32
    kb = w // 16
    qb, kk = divmod(w % 16, 4)
    n = 16 * i + 8 + 4 * kb + kk
    S = R.S[(i + 1) & 1][qb][4 * kb:4 * kb + 4]
    return n, f"{MF} {S}, {fbuf(R, n)}, {R.Q[kk][qb]}, {R.negm[qb] if kk == 0 else S}"


def ones_mfma(R, half, q, first):
    return f"{MF} {R.lq}, {R.ones[q]}, {R.S[half & 1][q][0:4]}, {'0' if first else R.lq}"


def check_p(R, txt):
    ops = [o.strip() for o in txt.split(None, 1)[1].split(", ")]
    for b in range(2):
        for q in range(4):
            if ops[2] == str(R.S[b][q][0:4]):
                h = max(hh for (hh, qq) in R.done if qq == q and hh % 2 == b)
                assert R.done[(h, q)] == 4, (txt, h, q, R.done[(h, q)])


def flush_cvt(g, R):
    for f in R.pend:
        f()
    R.pend = []


def emit_group(g, R, cfg, i, grp, first_pv=False, xs=None, dma=None, mf=True, reads=True, valu=None, mf_over=None, rd_over=None, ones_over=None):
    xs = xs or {}
    half, qb, j = sm_pair(cfg, i, grp)
    sm = 0 <= half < 64
    S = R.S[half & 1][qb]
    e0 = lambda: g(f"v_exp_f32 {S[j]}, {S[j]}")
    e1 = lambda: g(f"v_exp_f32 {S[j+1]}, {S[j+1]}")
    def cv():
        g(f"v_cvt_pk_bf16_f32 {S[j//2]}, {S[j]}, {S[j+1]}")
        R.done[(half, qb)] = R.done.get((half, qb), 0) + 1
    rd = []
    if rd_over is not None and grp in rd_over:
        rd = list(rd_over[grp])
    elif reads:
        for n in group_reads(cfg, i, grp):
            if frag_exists(n):
                rd += read_ops(g, R, cfg, n)
    plan = [[e0] if sm else [], rd[:2], [e1] if sm else [], rd[2:]]
    assert len(rd) <= 4
    hy = sm and cfg.hyb(half)
    while R.pend and len(plan[1]) < 2 and not hy:
        plan[1].append(R.pend.pop(0))
    if sm:
        R.pend.append(cv)
    if hy:
        if dma:
            assert not plan[1]
            plan[1] = [dma]
        if sm and qb % 2 == 0:
            assert len(R.pend) == 1 and not plan[3], (i, grp, len(R.pend))
            plan[3] = [lambda: g(f"v_add_f32 {R.lv[qb//2]}, {R.lv[qb//2]}, {S[j]}"), lambda: g(f"v_add_f32 {R.lv[qb//2]}, {R.lv[qb//2]}, {S[j+1]}")]
        else:
            while R.pend and len(plan[3]) < 2:
                plan[3].append(R.pend.pop(0))
    elif dma:
        assert not plan[3]
        plan[3] = [dma]
        assert len(R.pend) <= 2, "conversions fall too far behind"
    else:
        while R.pend and len(plan[3]) < 2:
            plan[3].append(R.pend.pop(0))

    if xs.get("w1"):
        assert len(plan[1]) == 1
        plan[1] = plan[1] + xs["w1"]

    def need_of(ii, ww):
        if mf_over is not None:
            if ii == i and ww in mf_over:
                return mf_over[ww][0]
            if ii > i:
                return None
        nn, _ = mfma_desc(R, cfg, ii, ww)
        return nn if frag_exists(nn) else None

    def prewait(w, span):
        ns = [need_of(*((i, w + d) if w + d < 64 else (i + 1, w + d - 64))) for d in range(1, span + 1)]
        ns = {n for n in ns if n is not None}
        return g.wait_both(None, lambda t: t[0] == "F" and t[1] in ns)
    has_ones = (grp in cfg.og(i) and frag_exists(16 * i + grp) and mf) if ones_over is None else grp in ones_over
    for w4 in range(4):
        w = 4 * grp + w4
        n, txt = mfma_desc(R, cfg, i, w, first_pv)
        have = frag_exists(n) and mf
        if mf_over is not None and w in mf_over:
            n, txt = mf_over[w]
            have = True
        if have:
            g.wait_lgkm(lambda t: t[0] == "F" and t[1] == n)
            check_p(R, txt)
            g(txt)
        elif sm and w4 == 3:
            g("s_nop 0")
        used = 0
        for fn in xs.get(w4, []):
            fn()
            used += 1
        if w4 in (0, 2) and not used:
            prewait(w, 2)
        for fn in plan[w4]:
            fn()
        if valu:
            for _ in range(2 - min(2, len(plan[w4]) * (2 if w4 in (0, 2) else 1))):
                if valu:
                    valu.pop(0)()
    if has_ones:
        txt = ones_over[grp] if ones_over is not None else ones_mfma(R, i - 1, 2 * cfg.og(i).index(grp) + 1 if cfg.hyb(i - 1) else cfg.og(i).index(grp), first_pv and grp == cfg.og(i)[0])
        check_p(R, txt)
        g(txt)
        for fn in xs.get(4, []):
            fn()


def step_extras(g, R, cfg, i, dma=True, alt=None, xtra=None, alt_groups=None):
    ex = {}

    def add_x(gp, w, fns):
        xs, d = ex.get(gp, ({}, None))
        xs.setdefault(w, []).extend(fns)
        ex[gp] = (xs, d)

    def add_d(gp, op):
        xs, d = ex.get(gp, ({}, None))
        assert d is None
        ex[gp] = (xs, op)
    def tile_loads(which, tile):
        ops = dma_ops(g, R, cfg, which, tile, False)
        og = cfg.og(i)[-2:][:cfg.l_ones]
        add_x((list(og) + list(cfg.l_groups))[0] - (0 if og else 1), 0 if og else 2, [lambda: set_m0(g, R, cfg, which, tile)])
        for gp in og:
            add_x(gp, 4, [ops.pop(0)])
        for gp in cfg.l_groups:
            add_d(gp, ops.pop(0))
        assert not ops
    if i % 2 == 0:
        e = i // 2
        if e <= 31 and cfg.flag_range[0] <= i <= cfg.flag_range[1]:
            def chk():
                g(f"s_cbranch_vccnz L_fspin{i}")
                g.label(f"L_fback{i}")
                R.fspins.append(i)
            add_x(6, 3, [lambda: g(f"s_add_u32 {R.sepoch}, {R.sepoch}, 1")])
            add_x(7, "w1", [lambda: g(f"v_mov_b32 {R.fE}, {R.sepoch}")])
            add_x(7, 3, [lambda: g.wait_vm(lambda t: t in (("K", e + 1), ("V", e), ("K", e)))])
            add_x(8, "w1", [lambda: g.ds(f"ds_write_b32 {R.fwa}, {R.fE}", ("FW", 16 * i))])
            add_x(10, "w1", [lambda: g.ds(f"ds_read_b32 {R.fF}, {R.fra}", ("FR", 16 * i))])
            add_x(12, 3, [lambda: g.wait_lgkm(lambda t: t[0] == "FR"), lambda: g(f"v_cmp_gt_u32 vcc, {R.sepoch}, {R.fF}")])
            add_x(13, 0, [chk])
        elif e <= 31:
            add_x(cfg.BAR - 1, 2, [lambda: g.wait_vm(lambda t: t in (("K", e + 1), ("V", e), ("K", e)))])
            if not cfg.no_barrier:
                add_x(cfg.BAR, 0, [lambda: g("s_barrier")])
        if cfg.dones(i) and dma and e + 2 <= 31 and not cfg.no_dma:
            tile_loads("V", e + 2)
            add_x(14, 0, [lambda: g(f"s_add_u32 {R.stile}, {R.stile}, 16384")])
    else:
        e = (i - 1) // 2
        if cfg.dones(i):
            if dma and e + 3 <= 31 and not cfg.no_dma:
                tile_loads("K", e + 3)
        elif dma and e + 3 <= 31 and not cfg.no_dma:
            ops = dma_ops(g, R, cfg, "K", e + 3, False) + dma_ops(g, R, cfg, "V", e + 3, False)
            for j, (gp, op) in enumerate(zip(cfg.dma_groups, ops)):
                add_d(gp, op)
                if j % 4 == 0:
                    add_x(gp, 0, [lambda which="KV"[j // 4]: set_m0(g, R, cfg, which, e + 3)])
            add_x(14, 0, [lambda: g(f"s_add_u32 {R.stile}, {R.stile}, 16384")])
    if alt:
        assert len(alt) <= len(alt_groups)
        for gp, (setup, op) in zip(alt_groups, alt):
            add_d(gp, op)
            if setup:
                add_x(gp, 0, setup)
    for (gp, w), fns in (xtra or {}).items():
        add_x(gp, w, fns)
    return ex


def emit_step(g, R, cfg, i, first_pv=False, groups=range(16), dma=True, alt=None, xtra=None, alt_groups=None, **kw):
    ex = step_extras(g, R, cfg, i, dma, alt, xtra, alt_groups)
    for grp in groups:
        xs, d = ex.get(grp, ({}, None))
        emit_group(g, R, cfg, i, grp, first_pv, xs, d, **kw)


def flag_spins(g, R):
    for i in R.fspins:
        g.label(f"L_fspin{i}")
        g(f"ds_read_b32 {R.fF}, {R.fra}")
        g("s_waitcnt lgkmcnt(0)")
        g(f"v_cmp_gt_u32 vcc, {R.sepoch}, {R.fF}")
        g("s_nop 1")
        g(f"s_cbranch_vccnz L_fspin{i}")
        g(f"s_branch L_fback{i}")


def flag_init(g, R, lane, base):
    g(f"s_lshl_b32 {R.stmp}, {R.swave}, 2")
    g(f"s_add_u32 {R.stmp}, {R.stmp}, {base}")
    g(f"v_mov_b32 {R.fwa}, {R.stmp}")
    g(f"v_and_b32 {R.fra}, 3, {lane}")
    g(f"v_lshlrev_b32 {R.fra}, 2, {R.fra}")
    if base:
        g(f"v_add_u32 {R.fra}, {base}, {R.fra}")
    g(f"v_mov_b32 {R.fE}, 0")
    g(f"s_mov_b32 {R.sepoch}, 0")
    g.ds(f"ds_write_b32 {R.fwa}, {R.fE}", ("FW", -1))
```

```python
import sys, math, struct
from asmlib import *
import attn17 as at
from attn16 import MF
from gen2 import fbits, srd, stamp, tr_addrs, dma_voffs, reduce_G_ops, K, KN, C_SCALE

U = 16384
H_BASE = 0
H_DUMMY = 7 << 20
SP_BASE = 8 << 20
FL_BASE = 32 << 20
ST_BASE = 64 << 20
RING_GQ = [4, 5, 6, 7, 8, 9]
RING_OD = [8, 4, 9, 5, 6, 7]
L_LIMIT = 2.0 ** 40
SPIN = 1 << 17


DOC = '''; ---------------------------------------------------------------------------------------------------------------
; ---------------------------------------------------------------------------------------------------------------
'''


class Opt:
    stamps = False
    lead = 2
    codepf = True
    hbits = 1
    nfill = 3
    fill_pos = (0,) * 8 + (9, 11, 13, 15) + (16,) * 8
    touch = True
    idle_pf = True
    code0 = 1
    pf_early = False
    h63 = 8
    peel = 1
    st1_group = 65
    st1_step = 6
    st2_step = 1
    st_late = 0
    sp_in = True
    wr_delay = True
    hybrid = True
    gq_stamps = ()
    od_stamps = ()
    w_mod = ''
    out_x4 = True
    out_mod = ' sc1'
    b_single = False
    fill_stats = (1, 3, 5, 7, 9, 11, 13, 15)
    hs_late = True
    h_lds_j = 4
    h_plan = (1, 4, 2, 4, 2, 3, 1, 8, 4, 8, 4, 4)
    tail_stamps = False
    mfma_sum = True
    idle_more = ()
    idle_wo = 0
    diag_nowait = False
    diag_st = ' sc1'
    sleep = 0
    flag_at = 0
    d_fifo = False
    flag_group = 150
    poll_group = 164
    look_group = 173
    sp_step = 2
    fill_pre = 0
    fill_post = 0
    x_bar = (3, 7, 9, 11, 13)
    x_split = 7
    catch = (5, 6)
    soft = True
    hoist = True
    trim = True
    sum_mid = 8
    sp_n = 10
    ln_lead = True
    last_q = False
    align = 3
    tlb = False
    tlb0 = 0
    stouch = 0
    tlb_sh = 20
    tlb_sh2 = 20
    tlb_first = False
    poll2 = True
    sum_early = 0
    x_group = 149
    o_catch = 4
    force_slow = False
    ticket = False
    echo = None
    dbgstamps = None
    attn = dict(BAR=10)


class Item:
    def __init__(self, setup, fn, late=False):
        self.setup, self.fn, self.late = list(setup), fn, late


class Piece:
    mod = ""

    def __init__(self, tag, unit, srd, voff, soff_reg, soff_setup):
        self.tag, self.unit, self.srd, self.voff, self.soff_reg = tag, unit, srd, voff, soff_reg
        self.soff_setup = soff_setup or []

    def items(self, g, R):
        def mk(b):
            off = f" offset:{b*1024}" if b else ""
            return lambda: g.vmem(f"buffer_load_dwordx4 {self.voff[b]}, {self.srd}, {self.soff_reg} offen{off}{Piece.mod} lds", self.tag)
        su = self.soff_setup + [f"s_add_u32 m0, {R.swoff}, {self.unit*U}"]
        return [Item(su if b == 0 else [], mk(b)) for b in range(4)]

    def emit_now(self, g, R):
        for it in self.items(g, R):
            for s in it.setup:
                g(s)
            if it.setup:
                g("s_nop 0")
            it.fn()

    def alt(self, g, R):
        return [([(lambda s=s: g(s)) for s in it.setup], it.fn) for it in self.items(g, R)]


class PSpec:
    def __init__(self, unit, tag, tr, split, acc, b, breads=(), label=None):
        self.unit, self.tag, self.tr, self.split, self.acc, self.b, self.breads, self.label = unit, tag, tr, split, acc, b, list(breads), label


def a_reads(g, P, AF, n):
    h, nb = divmod(n, 4)
    p = P[h]
    NB = AF.n // 4
    st, off = (0, (p.unit - 4) * U) if p.unit < 8 else (1, (p.unit - 8) * U)
    buf = AF[(n % NB) * 4:(n % NB) * 4 + 4]
    dt = 2048 if p.split else 512
    g.ds(f"ds_read_b64_tr_b16 {buf[0:2]}, {p.tr[st][nb]} offset:{off}", ("A", n))
    g.ds(f"ds_read_b64_tr_b16 {buf[2:4]}, {p.tr[st][nb]} offset:{off+dt}", ("A", n))


def lead_reads(k, P, AF):
    g = k.g
    for n in range(k.opt.lead):
        if n % 4 == 0:
            g.wait_vm(lambda t: t == P[n // 4].tag)
        a_reads(g, P, AF, n)


def stream(k, R, P, AF, w2, w1=None, fills=None, extra=None, pre=None, led=False):
    g = k.g
    L = k.opt.lead
    nfr = 4 * len(P)
    NB = AF.n // 4
    w1 = w1 or {}
    fills = list(fills or [])
    extra = extra or {}
    if not led:
        lead_reads(k, P, AF)
    if pre:
        pre()
    sq = []

    def put(win, nslots, used0):
        free = nslots
        if not used0 and sq:
            g(sq.pop(0))
        while free > 0 and sq:
            g(sq.pop(0))
            free -= 1
        while free > 0 and fills and fills[0][0] <= win:
            free -= fills.pop(0)[2]() or 1
        while k.opt.soft and win % 2 and fills and fills[0][0] <= win and fills[0][1] <= win + 2:
            fills.pop(0)[2]()

    for n in range(nfr):
        h, nb = divmod(n, 4)
        p = P[h]
        buf = AF[(n % NB) * 4:(n % NB) * 4 + 4]
        if nb == 0 and p.label:
            assert not sq
            g.label(p.label)
        for qb in range(4):
            win = 4 * n + qb
            while fills and fills[0][1] <= win:
                fills.pop(0)[2]()
            acc, first = p.acc(nb, qb)
            B, btag = p.b(qb)
            g.wait_lgkm(lambda t: (t[0] == "A" and t[1] <= n) or (btag is not None and t == btag))
            g(f"{MF} {acc}, {buf}, {B}, {'0' if first else acc}")
            if qb == 0:
                if n + L < nfr:
                    a_reads(g, P, AF, n + L)
                else:
                    put(win, 2, False)
            elif qb == 1:
                if n in w2 and (w2[n].late or n == 0):
                    sq.extend(w2[n].setup)
                br = p.breads[nb:nb + 2] if nb in (0, 2) else []
                if k.opt.b_single and not (n in w1 or n + 1 in w1 or n - 1 in w1):
                    br = p.breads[nb:nb + 1]
                if n in w1:
                    assert not br
                    while sq:
                        g(sq.pop(0))
                    w1[n].fn()
                elif br:
                    for tg, txt in br:
                        g.ds(txt, tg)
                    while sq:
                        g(sq.pop(0))
                    if len(br) == 1 and fills and fills[0][0] <= win:
                        fills.pop(0)[2]()
                else:
                    put(win, 2, False)
                    while sq:
                        g(sq.pop(0))
            elif qb == 2:
                if n in w2:
                    w2[n].fn()
                else:
                    put(win, 2, False)
            else:
                nn = n + 1 + L
                vp = (lambda t: t == P[nn // 4].tag) if (nn < nfr and nn % 4 == 0) else None
                if k.opt.diag_nowait and P[0].split and n > 60:
                    vp = None
                nxt = P[(n + 1) // 4] if n + 1 < nfr else None
                bt = [nxt.b(q)[1] for q in range(4)] if (nxt and nb == 3) else []
                used = g.wait_both(vp, lambda t: (t[0] == "A" and t[1] <= n + 1) or t in bt)
                ns = 2
                if n + 1 in w1:
                    for s_ in w1[n + 1].setup:
                        g(s_)
                        ns -= used
                        used = True
                if n + 1 in w2 and not w2[n + 1].late:
                    sq.extend(w2[n + 1].setup)
                put(win, ns, used)
            for f in extra.get(win, []):
                f()
    assert not sq
    return fills


def gen_kernel(opt):
    k = K(opt)
    g = k.g
    Piece.mod = opt.w_mod
    cfg = at.Cfg()
    for a, v in opt.attn.items():
        setattr(cfg, a, v)
    cfg.KBASE, cfg.VBASE = 6 * U, 2 * U
    if opt.hybrid:
        cfg.hyb_range, cfg.dones_range = (1, 50), (2, 50)
    cfg.kslot = [2, 3, 0, 1]
    cfg.vslot = [2, 3, 0, 1]
    R = at.Regs()
    emit = lambda lst: [g(x) for x in lst]
    clo = lambda lst: [(lambda x=x: g(x)) for x in lst]
    S = Alloc("s", 4, 101)
    for n in ("X", "K", "V", "WQ", "WO", "WA", "WB", "WD", "OUT", "WS", "DBG"):
        setattr(R, "srd" + n, S(4, 4))
    ptr = S(16, 4)
    ptr2 = S(8, 4)
    R.swave = S(1); R.skvh = S(1); R.sp = S(1); R.swoff = S(1); R.stmp = S(1); R.stmp2 = S(1)
    R.stile = S(1); R.sloop = S(1); srot = S(1); sslow = S(1); sxo = S(1); sfl = S(1)
    R.st = S(2, 2); R.st2 = S(2, 2); sout = S(2, 2); sst = S(1); spin = S(1); spar = S(1); sskip = S(1); sxr = S(1); ssig = sskip; svid = S(1); sdb = S(1)
    srdF = R.srdOUT
    S2 = Alloc("s", ptr.b, ptr.b + 24)
    sG = S2(1); sGb = S2(1); sGl = S2(1); sQ = S2(1); sO = S2(1); sD = S2(1); sDb = S2(1); sDl = S2(1)
    sH = S2(1); sHb = S2(1); sHl = S2(1); sSP = S2(1)
    spl, sSL = sG, sGb
    sF, sFb, sFl, sFs, sFu = sO, sD, sDb, sDl, sHb
    msk = [S2(2, 2) for _ in range(4)]
    ACC = lambda blk, qb: Reg("v", (blk * 4 + qb) * 4, 4)
    R.O = [[ACC(db, qb) for qb in range(4)] for db in range(8)]
    R.S = [[Reg("v", 128 + b * 32 + qb * 8, 8) for qb in range(4)] for b in range(2)]
    AF = Reg("v", 128, 32)
    BF = Reg("v", 160, 32)
    DACC = lambda nb, qb: Reg("v", 160 + (qb * 4 + nb) * 4, 4)
    V = Alloc("v", 192, 254)
    R.negm = [V(4) for _ in range(4)]
    lq = V(4)
    R.l = [lq[j] for j in range(4)]
    R.kaddr = [V(1) for _ in range(4)]
    R.vaddr = [V(1) for _ in range(8)]
    R.kdma = [V(1) for _ in range(2)]
    R.vdma = [V(1) for _ in range(2)]
    tmp = V(4, 2)
    tm2 = V(4, 2)
    lane = V(1); voff16 = V(1); vhoff = V(1); voffx = V(1)
    voffS = [V(1) for _ in range(4)]
    trS = [[V(1) for _ in range(4)] for _ in range(2)]
    vpoll = V(1)
    V2 = Alloc("v", 160, 192)
    trN = [[V2(1) for _ in range(4)] for _ in range(2)]
    voffG = [V2(1) for _ in range(4)]
    voffQ = [V2(1) for _ in range(4)]
    lt = V2(12, 4)
    xw = V2(1)
    xa = V2(1)
    voffF = [tm2[j] for j in range(4)]
    HP = R.negm + [lt[0:4], lt[4:8], lt[8:12], lq]
    R.Q = [[Reg("a", (kk * 4 + qb) * 4, 4) for qb in range(4)] for kk in range(4)]
    R.kfrag = Reg("a", 64, 32)
    R.vfrag = Reg("a", 96, 16)
    R.ones = [Reg("a", 112 + 4 * q, 4) for q in range(4)]
    R.lq = lq
    R.lv = [tm2[3], V(1)]
    R.pend = []
    R.done = {}
    XB = lambda ks, qb: Reg("a", (ks * 4 + qb) * 4, 4)
    JL = opt.h_lds_j
    HB = lambda j, qb: Reg("a", (128 + 16 * j if j < JL else 96 + 16 * (j - JL) if j < JL + 2 else (96 + 16 * j) % 256) + 4 * qb, 4)

    g("s_cmp_ge_u32 s2, 256")
    g("s_cbranch_scc1 L_end")
    g(f"v_lshrrev_b32 {tmp[0]}, 6, v0")
    g(f"v_and_b32 {lane}, 63, v0")
    g(f"s_mov_b32 {sslow}, 0")
    if opt.code0:
        g(f"s_getpc_b64 {R.st}")
        g(f"v_lshlrev_b32 {tmp[1]}, 4, v0")
        g(f"global_load_dwordx4 v[64:67], {tmp[1]}, {R.st}")
        for j in range(1, opt.code0):
            g(f"v_add_u32 {tmp[1]}, 4096, {tmp[1]}")
            g(f"global_load_dwordx4 v[64:67], {tmp[1]}, {R.st}")
    g(f"v_readfirstlane_b32 {R.swave}, {tmp[0]}")
    if opt.stamps:
        g("v_mov_b32 v254, 0")
        g("v_mov_b32 v255, 0")
    g.label("L_restart")
    stamp(k, R, "start")
    g(f"s_load_dwordx8 {ptr2}, s[0:1], 64")
    g(f"s_load_dwordx16 {ptr}, s[0:1], 0")
    g(f"s_lshl_b32 {R.swoff}, {R.swave}, 12")
    if opt.ticket:
        g(f"s_getreg_b32 {sdb}, hwreg(HW_REG_XCC_ID, 0, 3)")
        g(f"s_or_b32 {R.stmp2}, {R.swave}, {sslow}")
        g("s_waitcnt lgkmcnt(0)")
        g("s_cbranch_scc1 L_noticket0")
        g(f"s_lshl_b32 {spin}, {sdb}, 5")
        g(f"s_mov_b32 {svid}, 1")
        g(f"s_atomic_add {svid}, {ptr2[4:6]}, {spin} glc")
        g.label("L_noticket0")
    g(f"v_and_b32 {tmp[0]}, 15, {lane}")
    g(f"v_lshlrev_b32 {tmp[0]}, 10, {tmp[0]}")
    g(f"v_lshrrev_b32 {tmp[1]}, 4, {lane}")
    g(f"v_lshl_add_u32 {xa}, {tmp[1]}, 4, {tmp[0]}")
    g(f"v_lshl_add_u32 {voffx}, {tmp[1]}, 3, {tmp[0]}")
    mark0 = len(g.lines)
    emit(dma_voffs(g, voffG, lane, tmp, 3584, False))
    emit(dma_voffs(g, voffQ, lane, tmp, 8192, False))
    emit(tr_addrs(g, trN, lane, tmp, R.swoff, False))
    at.lane_consts(g, R, cfg, tmp, lane, R.swave)
    emit(tr_addrs(g, trS, lane, tmp, R.swoff, True))
    emit(dma_voffs(g, voffS, lane, tmp, 1024, True))
    g(f"v_lshlrev_b32 {voff16}, 4, {lane}")
    ones, D1, D2 = lt[0:4], lt[4:8], lt[8:12]
    for j in range(4):
        g(f"v_mov_b32 {ones[j]}, 0x3f803f80")
    g(f"s_lshl_b32 {R.stmp}, {R.swave}, 10")
    g(f"v_add_u32 {xw}, {R.stmp}, {voff16}")
    g(f"v_mov_b32 {vpoll}, 0")
    cblock = []
    if not opt.ticket:
        cblock = g.lines[mark0:]
        del g.lines[mark0:]
    if opt.ticket:
        g(f"s_cmp_lg_u32 {sslow}, 0")
        g("s_cbranch_scc1 L_haverole")
        g(f"v_mov_b32 {tmp[0]}, {10*U-4}")
        g(f"s_cmp_lg_u32 {R.swave}, 0")
        g("s_cbranch_scc1 L_noticket1")
        g("s_waitcnt lgkmcnt(0)")
        g(f"s_cmp_lt_u32 {svid}, 32")
        g("s_cbranch_scc0 L_overflow")
        g.label("L_ticket")
        g(f"s_lshl_b32 {svid}, {svid}, 3")
        g(f"s_or_b32 {svid}, {svid}, {sdb}")
        g(f"v_mov_b32 {tmp[1]}, {svid}")
        g(f"ds_write_b32 {tmp[0]}, {tmp[1]}")
        g("s_waitcnt lgkmcnt(0)")
        g.label("L_noticket1")
        g("s_barrier")
        g(f"ds_read_b32 {tmp[1]}, {tmp[0]}")
        g("s_waitcnt lgkmcnt(0)")
        g(f"v_readfirstlane_b32 {svid}, {tmp[1]}")
        g("s_nop 0")
        g(f"s_and_b32 {svid}, {svid}, 255")
        g.label("L_haverole")
    else:
        g(f"s_mov_b32 {svid}, s2")
    hb = opt.hbits
    if hb == 0:
        g(f"s_and_b32 {R.skvh}, {svid}, 7")
        g(f"s_lshr_b32 {R.sp}, {svid}, 3")
        g(f"s_and_b32 {srot}, {R.sp}, 15")
        g(f"s_lshr_b32 {spar}, {R.sp}, 4")
    else:
        assert hb == 1
        g(f"s_and_b32 {R.skvh}, {svid}, 3")
        g(f"s_lshl_b32 {R.skvh}, {R.skvh}, 1")
        g(f"s_bfe_u32 {R.stmp}, {svid}, {3 | (1 << 16)}")
        g(f"s_or_b32 {R.skvh}, {R.skvh}, {R.stmp}")
        g(f"s_lshl_b32 {srot}, {R.stmp}, 3")
        g(f"s_bfe_u32 {R.sp}, {svid}, {2 | (1 << 16)}")
        g(f"s_lshl_b32 {R.sp}, {R.sp}, 4")
        g(f"s_lshr_b32 {R.stmp}, {svid}, 4")
        g(f"s_or_b32 {R.sp}, {R.sp}, {R.stmp}")
        g(f"s_and_b32 {spar}, {R.sp}, 1")
        g(f"s_add_u32 {srot}, {srot}, {R.sp}")
        g(f"s_and_b32 {srot}, {srot}, 14")
    g(f"s_lshl_b32 {sxo}, {R.sp}, 16")
    g(f"s_lshl_b32 {R.stmp}, {R.swave}, 14")
    g(f"s_add_u32 {sxo}, {sxo}, {R.stmp}")
    g(f"s_lshl_b32 {sxr}, {srot}, 6")
    g("s_waitcnt lgkmcnt(0)")
    srd(g, R.srdX, ptr[0:2], 2 << 20)
    if opt.tlb_first:
        g(f"v_lshlrev_b32 {tmp[2]}, 20, {lane}")
        g("s_mov_b64 exec, 3")
        for pp in (ptr[12:14], ptr[14:16]):
            g(f"global_load_dword v253, {tmp[2]}, {pp}")
        g("s_mov_b64 exec, -1")
    for j in range(16):
        g(f"s_or_b32 {R.stmp}, {sxo}, {sxr}")
        g.vmem(f"buffer_load_dwordx4 v[{4*j}:{4*j+3}], {xa}, {R.srdX}, {R.stmp} offen", ("X", j))
        if j < 15:
            g(f"s_add_u32 {sxr}, {sxr}, 64")
            g(f"s_and_b32 {sxr}, {sxr}, 1023")
        if j in opt.x_bar:
            g("s_barrier")
        if j == opt.x_split:
            mark = len(g.lines)
    xtail = g.lines[mark:]
    del g.lines[mark:]
    stamp(k, R, "xissue")
    if opt.stouch:
        MB = 1 << 20
        g(f"s_lshl_b32 {R.stmp}, {R.skvh}, 19")
        early = [(ptr[12:14], 0), (ptr[14:16], 0), (ptr[12:14], MB), (ptr[14:16], MB), (ptr[6:8], 0), (ptr[6:8], MB), (ptr[6:8], 2 * MB), (ptr[6:8], 3 * MB),
                 (ptr[2:4], R.stmp), (ptr[4:6], R.stmp)]
        late = [(ptr[8:10], R.stmp), (ptr2[0:2], 0), (ptr2[0:2], MB), (ptr2[2:4], sxo), (ptr2[4:6], 0)]
        for pp, off in early + (late if opt.stouch > 1 else []):
            if isinstance(off, int) and off:
                g(f"s_mov_b32 {R.stmp2}, {off}")
                off = R.stmp2
            g(f"s_load_dword {spin}, {pp}, {off}")
        g(f"s_mul_i32 {R.stmp}, {R.sp}, {56*4096}")
        g(f"s_load_dword {spin}, {ptr2[6:8]}, {R.stmp}")
        g(f"s_add_u32 {R.stmp}, {R.stmp}, {56*4096-4}")
        g(f"s_load_dword {spin}, {ptr2[6:8]}, {R.stmp}")
        if opt.stouch > 1:
            g(f"s_lshl_b32 {R.stmp}, {R.sp}, 19")
            g(f"s_add_u32 {R.stmp}, {R.stmp}, {SP_BASE}")
            g(f"s_load_dword {spin}, {ptr2[6:8]}, {R.stmp}")
    g.lines += cblock
    g(f"s_lshl_b32 {R.stmp}, {spar}, 7")
    for kk in range(4):
        g(f"v_xor_b32 {R.kaddr[kk]}, {R.stmp}, {R.kaddr[kk]}")
    g(f"s_cmp_eq_u32 {R.skvh}, 7")
    g(f"s_cselect_b32 {sskip}, 1, {sslow}")
    g(f"s_cmp_eq_u32 {spar}, 0")
    g(f"s_cselect_b64 {R.srdWA[0:2]}, {ptr[12:14]}, {ptr[14:16]}")
    g(f"s_cselect_b64 {R.srdWB[0:2]}, {ptr[14:16]}, {ptr[12:14]}")
    for d in (R.srdWA, R.srdWB):
        g(f"s_mov_b32 {d[2]}, {512*3584}")
        g(f"s_mov_b32 {d[3]}, 0x20000")
    g(f"s_lshl_b32 {R.stmp}, {R.skvh}, 19")
    srd(g, R.srdWQ, ptr[6:8], 4 << 20)
    srd(g, R.srdK, ptr[2:4], 524288, R.stmp)
    srd(g, R.srdV, ptr[4:6], 524288, R.stmp)
    srd(g, R.srdWO, ptr[8:10], 524288, R.stmp)
    srd(g, R.srdWD, ptr2[0:2], 1792 * 1024)
    g(f"s_mov_b64 {sout}, {ptr2[2:4]}")
    srd(g, R.srdDBG, ptr2[4:6], 256)
    srd(g, R.srdWS, ptr2[6:8], 256 << 20)
    if opt.stamps:
        g(f"s_lshl_b32 {sst}, {svid}, 2")
        g(f"s_add_u32 {sst}, {sst}, {R.swave}")
        g(f"s_lshl_b32 {sst}, {sst}, 9")
        g(f"s_add_u32 {sst}, {sst}, {ST_BASE}")
    GS = 32 * 3584
    g(f"s_lshl_b32 {sGb}, {R.skvh}, 9")
    g(f"s_lshl_b32 {R.stmp}, {R.swave}, 7")
    g(f"s_add_u32 {sGb}, {sGb}, {R.stmp}")
    g(f"s_add_u32 {sGl}, {sGb}, {16*GS}")
    g(f"s_mul_i32 {sG}, {srot}, {GS}")
    g(f"s_add_u32 {sG}, {sG}, {sGb}")
    g(f"s_lshl_b32 {sQ}, {R.skvh}, 2")
    g(f"s_add_u32 {sQ}, {sQ}, {R.swave}")
    g(f"s_lshl_b32 {sQ}, {sQ}, 1")
    g(f"s_add_u32 {sQ}, {sQ}, {spar}")
    g(f"s_lshl_b32 {sQ}, {sQ}, 7")
    g(f"s_lshl_b32 {R.stmp}, {srot}, 18")
    g(f"s_add_u32 {sQ}, {sQ}, {R.stmp}")
    g(f"s_mul_i32 {sH}, {R.sp}, {56*4096}")
    g(f"s_lshl_b32 {R.stmp}, {R.skvh}, 15")
    g(f"s_add_u32 {sH}, {sH}, {R.stmp}")
    g(f"s_cmp_eq_u32 {sskip}, 0")
    g(f"s_cselect_b32 {sH}, {sH}, {H_DUMMY}")
    g(f"s_lshl_b32 {R.stmp}, {R.swave}, 13")
    g(f"s_add_u32 {sH}, {sH}, {R.stmp}")
    g(f"s_lshl_b32 {sfl}, {R.sp}, 2")
    g(f"s_add_u32 {sfl}, {sfl}, {R.swave}")
    g(f"s_lshl_b32 {sfl}, {sfl}, 3")
    g(f"s_add_u32 {sfl}, {sfl}, {R.skvh}")
    g(f"s_lshl_b32 {sfl}, {sfl}, 2")
    g(f"s_add_u32 {sfl}, {sfl}, {FL_BASE}")
    g(f"s_lshr_b32 {sdb}, {R.sp}, 2")
    g(f"s_lshl_b32 {sdb}, {sdb}, 3")
    g(f"s_and_b32 {R.stmp}, {R.sp}, 3")
    g(f"s_add_u32 {sdb}, {sdb}, {R.stmp}")
    g(f"s_lshl_b32 {sdb}, {sdb}, 2")
    g(f"v_and_b32 {tmp[0]}, 3, {lane}")
    for j in range(1, 4):
        g(f"v_cmp_eq_u32 {msk[j]}, {j}, {tmp[0]}")
    g(f"v_bfe_u32 {tmp[0]}, {lane}, 2, 2")
    g(f"v_lshrrev_b32 {tmp[1]}, 4, {lane}")
    g(f"v_cmp_eq_u32 {msk[0]}, {tmp[0]}, {tmp[1]}")

    def kv_piece(which, tile, setup=True):
        u = (cfg.KBASE + cfg.kslot[tile % 4] * U if which == "K" else cfg.VBASE + cfg.vslot[tile % 4] * U) // U
        d = R.kdma if which == "K" else R.vdma
        return Piece((which, tile), u, R.srdK if which == "K" else R.srdV, [d[0], d[0], d[1], d[1]], R.stile,
                     [f"s_mov_b32 {R.stile}, {tile*U}"] if setup else [])

    def gq_piece(h):
        u = RING_GQ[h % 6]
        if h < 32:
            su = [f"s_add_u32 {sG}, {sG}, {GS}", f"s_cmp_lt_u32 {sG}, {sGl}", f"s_cselect_b32 {sG}, {sG}, {sGb}"] if h else []
            return Piece(("W", h), u, R.srdWB if h >= 16 else R.srdWA, voffG, sG, su)
        if h < 64:
            su = [f"s_add_u32 {sQ}, {sQ}, {1<<18}", f"s_and_b32 {sQ}, {sQ}, {(4<<20)-1}"] if h != 32 else []
            if h == 48:
                su.append(f"s_xor_b32 {sQ}, {sQ}, 128")
            return Piece(("W", h), u, R.srdWQ, voffQ, sQ, su)
        p = kv_piece(*[("K", 0), ("K", 1), ("V", 0), ("V", 1), ("K", 2)][h - 64])
        assert p.unit == u
        return p

    g(f"s_cmp_eq_u32 {sskip}, 0")
    g(f"s_cselect_b64 {srdF[0:2]}, {R.srdWA[0:2]}, {R.srdWQ[0:2]}")
    g(f"s_cselect_b32 {srdF[2]}, {R.srdWA[2]}, {R.srdWQ[2]}")
    g(f"s_mov_b32 {srdF[3]}, 0x20000")
    g(f"s_cselect_b32 {sF}, {sG}, {sQ}")
    g(f"s_mov_b32 {sFs}, {GS}")
    g(f"s_cselect_b32 {sFs}, {sFs}, {1<<18}")
    g(f"s_cselect_b32 {sFu}, 0, {2*U}")
    g(f"s_cselect_b64 vcc, -1, 0")
    g(f"s_and_b32 {R.stmp}, {sQ}, 8191")
    g(f"s_cmp_eq_u32 {sskip}, 0")
    g(f"s_cselect_b32 {sFb}, {sGb}, {R.stmp}")
    g(f"s_lshl_b32 {sFl}, {sFs}, 4")
    g(f"s_add_u32 {sFl}, {sFl}, {sFb}")
    g(f"s_add_u32 {sFu}, {sFu}, {R.swoff}")
    for b in range(4):
        g(f"v_cndmask_b32 {voffF[b]}, {voffQ[b]}, {voffG[b]}, vcc")
    fillq = []
    for h in range(opt.nfill):
        for b in range(4):
            su = []
            if b == 0:
                if h:
                    su += [f"s_add_u32 {sF}, {sF}, {sFs}", f"s_cmp_lt_u32 {sF}, {sFl}", f"s_cselect_b32 {sF}, {sF}, {sFb}"]
                if h == 4:
                    su += [f"s_cmp_eq_u32 {sskip}, 0", f"s_cselect_b32 {sFu}, {4*U}, 0", f"s_add_u32 {sFu}, {sFu}, {R.swoff}", f"s_add_u32 m0, {sFu}, {4*U}"]
                else:
                    su += [f"s_add_u32 m0, {sFu}, {(4+h)*U}"]
            off = f" offset:{b*1024}" if b else ""
            fillq.append(Item(su, lambda b=b, h=h, off=off: g.vmem(f"buffer_load_dwordx4 {voffF[b]}, {srdF}, {sF} offen{off} lds", ("W", h))))

    def fill_one():
        if fillq:
            it = fillq.pop(0)
            emit(it.setup)
            if it.setup:
                g("s_nop 0")
            it.fn()
    def touch(dst, tag, items, sh):
        g(f"v_lshlrev_b32 {tmp[0]}, {sh}, {lane}")
        for srd_, soff, nbytes in items:
            n_ = min(64, -(-nbytes >> sh) + (1 if soff != "0" else 0))
            g(f"s_mov_b64 exec, {(1 << n_) - 1 if n_ < 32 else -1}")
            g.vmem(f"buffer_load_dword {dst}, {tmp[0]}, {srd_}, {soff} offen", tag)
        g("s_mov_b64 exec, -1")

    def tlb_touch():
        if opt.tlb_sh == 20:
            touch("v253", ("PF",), [(R.srdWQ, "0", 4 << 20), (R.srdWS, "0", 8 << 20), (R.srdK, "0", 1 << 19), (R.srdV, "0", 1 << 19), (R.srdWB, "0", 512 * 3584)], 20)
        else:
            touch("v253", ("PF",), [(R.srdWB, "0", 512 * 3584), (R.srdWQ, "0", 4 << 20), (R.srdK, "0", 1 << 19), (R.srdV, "0", 1 << 19), (R.srdWS, sH, 1)], opt.tlb_sh)

    def code_pf():
        if not opt.codepf:
            return
        g(f"s_getpc_b64 {R.st}")
        g.label("L_pc")
        g(f"s_and_b32 {R.stmp}, {R.sp}, 7")
        g(f"s_lshl_b32 {R.stmp}, {R.stmp}, 2")
        g(f"s_add_u32 {R.stmp}, {R.stmp}, {R.swave}")
        g(f"s_lshl_b32 {R.stmp}, {R.stmp}, 12")
        g(f"v_lshl_add_u32 {tmp[0]}, {lane}, 6, {R.stmp}")
        g(f"v_min_u32 {tmp[0]}, L_end-L_pc, {tmp[0]}")
        g.vmem(f"global_load_dword v253, {tmp[0]}, {R.st}", ("PF",))

    if opt.pf_early:
        code_pf()
        g.vm.insert(8, g.vm.pop())
    if opt.tlb0 == 1:
        tlb_touch()
        g.vm[8:8] = [g.vm.pop() for _ in range(5)]
    for j in range(opt.fill_pre):
        fill_one()
        g.vm.insert(opt.x_split + 1 + j, g.vm.pop())
    g.lines += xtail
    for j in range(opt.fill_post):
        fill_one()
    stamp(k, R, "xissue2")
    g("s_mov_b64 exec, 1")
    g.vmem(f"buffer_store_dword {vpoll}, off, {R.srdWS}, {sfl} sc1", ("FZ",))
    g("s_mov_b64 exec, -1")
    if not opt.pf_early:
        code_pf()

    UN = [64 + j for j in range(96)] + [192 + j for j in range(16)]

    def unpack(ks, dst):
        for d in range(4):
            g(f"v_lshlrev_b32 v{dst+2*d}, 16, v{4*ks+d}")
            g(f"v_and_b32 v{dst+2*d+1}, 0xffff0000, v{4*ks+d}")
    for ks in range(16):
        g.wait_vm(lambda t: t == ("X", ks))
        X = Reg("v", 4 * ks, 4)
        g(f"{MF} {D1}, {ones}, {X}, {'0' if ks == 0 else D1}")
        g(f"{MF} {D2}, {X}, {X}, {'0' if ks == 0 else D2}")
        if ks < 14:
            unpack(ks, UN[8 * ks])
        if ks in opt.fill_stats:
            fill_one()
    stamp(k, R, "x15")
    nf = [opt.fill_pre + opt.fill_post + len(opt.fill_stats)]

    def fills_at(pos):
        while fillq and opt.fill_pos[nf[0]] <= pos:
            fill_one()
            nf[0] += 1
    if opt.stouch:
        g("s_waitcnt lgkmcnt(0)")
    fills_at(0)
    if opt.fill_pre + opt.fill_post + len(opt.fill_stats) >= 8:
        g("s_nop 7")
    b_ = tmp[1]
    g(f"v_cndmask_b32 {tmp[2]}, {D2[0]}, {D2[1]}, {msk[1]}")
    g(f"v_cndmask_b32 {tmp[2]}, {tmp[2]}, {D2[2]}, {msk[2]}")
    g(f"v_cndmask_b32 {tmp[2]}, {tmp[2]}, {D2[3]}, {msk[3]}")
    g(f"v_cndmask_b32 {tmp[2]}, 0, {tmp[2]}, {msk[0]}")
    g(f"v_mul_f32 {b_}, {fbits(1/512)}, {D1[0]}")
    emit(reduce_G_ops([tmp[2]], [tmp[3]], "v_add_f32"))
    g(f"v_mul_f32 {tmp[3]}, {b_}, {b_}")
    g(f"s_mov_b32 {R.stmp}, {fbits(1/512)}")
    g(f"v_fma_f32 {tmp[2]}, {tmp[2]}, {R.stmp}, -{tmp[3]}")
    g(f"v_max_f32 {tmp[2]}, 0, {tmp[2]}")
    g(f"v_add_f32 {tmp[2]}, {fbits(1e-5)}, {tmp[2]}")
    g(f"v_rsq_f32 {tmp[2]}, {tmp[2]}")
    g("s_nop 0")
    AB = lt[0:4]
    g(f"v_mul_f32 {AB[0]}, {fbits(C_SCALE)}, {tmp[2]}")
    g(f"v_mul_f32 {AB[1]}, {fbits(C_SCALE)}, {tmp[2]}")
    g(f"v_mul_f32 {AB[2]}, {AB[0]}, -{b_}")
    g(f"v_mul_f32 {AB[3]}, {AB[0]}, -{b_}")
    for ks in range(16):
        fills_at(ks)
        src = UN[8 * ks] if ks < 14 else UN[8 * (ks - 14)]
        if ks >= 14:
            unpack(ks, src)
        if opt.wr_delay and ks:
            g.ds(f"ds_write_b128 {xw}, v[{4*ks-4}:{4*ks-1}] offset:{(ks-1)*4096}", ("W",))
        for d in range(4):
            g(f"v_pk_fma_f32 v[{src+2*d}:{src+2*d+1}], v[{src+2*d}:{src+2*d+1}], {AB[0:2]}, {AB[2:4]}")
        for d in range(4):
            g(f"v_cvt_pk_bf16_f32 v{4*ks+d}, v{src+2*d}, v{src+2*d+1}")
        if not opt.wr_delay or ks == 15:
            g.ds(f"ds_write_b128 {xw}, v[{4*ks}:{4*ks+3}] offset:{ks*4096}", ("W",))
        if len(g.lgkm) >= 14:
            g("s_waitcnt lgkmcnt(8)")
            g.lgkm = g.lgkm[-8:]
    fills_at(16)
    if opt.tlb0 == 2:
        tlb_touch()
    g(f"s_cmp_eq_u32 {sskip}, 0")
    g(f"s_cselect_b32 {sG}, {sF}, {sG}")
    g(f"s_cselect_b32 {sQ}, {sQ}, {sF}")
    srd(g, R.srdOUT, sout, 2 << 20)

    def bread(ks, qb):
        return (("B", ks, qb), f"ds_read_b128 {XB(ks, qb)}, {voff16} offset:{(ks*4+qb)*1024}")
    P = []
    for h in range(64):
        ks, half = h & 15, (h >> 4) & 1
        P.append(PSpec(RING_GQ[h % 6], ("W", h), trN, False,
                       (lambda nb, qb, half=half, ks=ks: (ACC(4 * half + nb, qb), ks == 0)),
                       (lambda qb, h=h, ks=ks: (XB(ks, qb), ("B", ks, qb) if h < 16 else None)),
                       [bread(h + 1, qb) for qb in range(4)] if h < 15 else [],
                       "L_Q" if h == 32 else None))
    HA = Reg("a", 128, 32)

    def h_store(j):
        off = f" offset:{(j&3)*1024}" if j & 3 else ""
        return Item([f"s_add_u32 {sH}, {sH}, 4096"] if j == 4 else [],
                    lambda: g.vmem(f"buffer_store_dwordx4 {HA[4*j:4*j+4] if opt.hs_late else HP[j]}, {voff16}, {R.srdWS}, {sH} offen{off} sc1", ("HS", 0)))
    if opt.hs_late:
        q = [it for h in range(opt.nfill, 69) for it in gq_piece(h).items(g, R)]
    else:
        q = [it for h in range(opt.nfill, 67) for it in gq_piece(h).items(g, R)] + [h_store(j) for j in range(8)]
    w2, w1 = {}, {}
    nx, nxt = 4 * (5 - opt.nfill), opt.catch[0]
    for gp in range(256):
        if nx and gp >= nxt and gp % 2 and not q[1].setup and gp != 128:
            w1[gp] = q.pop(0)
            nx, nxt = nx - 1, nxt + opt.catch[1]
        w2[gp] = q.pop(0)
    assert not q
    w2[128].late = True
    fills = []
    for fb in range(4):
        for qb in range(4):
            for r in range(4):
                fills.append((31 * 16 + 4 * fb + qb + 5, 32 * 16 + 4 * fb + qb,
                              lambda fb=fb, qb=qb, r=r: g(f"v_mul_f32 {ACC(4+fb, qb)[r]}, {ACC(fb, qb)[r]}, {ACC(4+fb, qb)[r]}")))
    for u in range(2):
        for qb in range(4):
            for b in range(2):
                for hf in range(2):
                    X_ = ACC(4 + 2 * u + b, qb)
                    fills.append((0, 48 * 16, lambda X_=X_, d=HP[u*4+qb][2*b+hf], hf=hf: g(f"v_cvt_pk_bf16_f32 {d}, {X_[2*hf]}, {X_[2*hf+1]}")))

    def q_epi(kk):
        o = []
        for qb in range(4):
            A_, B_ = ACC(2 * kk, qb), ACC(2 * kk + 1, qb)
            o += [f"v_cvt_pk_bf16_f32 {A_[0]}, {A_[0]}, {A_[1]}", f"v_cvt_pk_bf16_f32 {A_[1]}, {A_[2]}, {A_[3]}",
                  f"v_cvt_pk_bf16_f32 {B_[0]}, {B_[0]}, {B_[1]}", f"v_cvt_pk_bf16_f32 {B_[1]}, {B_[2]}, {B_[3]}"]
        for sw in ("v_permlane32_swap_b32", "v_permlane16_swap_b32"):
            for qb in range(4):
                A_, B_ = ACC(2 * kk, qb), ACC(2 * kk + 1, qb)
                o += [f"{sw} {A_[0]}, {B_[0]}", f"{sw} {A_[1]}, {B_[1]}"]
        for qb in range(4):
            A_, B_ = ACC(2 * kk, qb), ACC(2 * kk + 1, qb)
            Q = R.Q[kk][qb]
            o += [f"v_accvgpr_write_b32 {Q[0]}, {A_[0]}", f"v_accvgpr_write_b32 {Q[1]}, {A_[1]}",
                  f"v_accvgpr_write_b32 {Q[2]}, {B_[0]}", f"v_accvgpr_write_b32 {Q[3]}, {B_[1]}"]
        return o
    for kk in range(2):
        for s_ in q_epi(kk):
            fills.append((50 * 16, 10 ** 9, lambda s_=s_: g(s_)))
    on = [f"v_and_b32 {tmp[0]}, 3, {lane}", f"v_mov_b32 {tmp[1]}, 0x3f803f80"]
    for q_ in range(4):
        on += [f"v_cmp_eq_u32 vcc, {q_}, {tmp[0]}", "s_nop 1", f"v_cndmask_b32 {tmp[2]}, 0, {tmp[1]}, vcc"]
        on += [f"v_accvgpr_write_b32 {R.ones[q_][j]}, {tmp[2]}" for j in range(4)]
    for s_ in on:
        fills.append((56 * 16, 10 ** 9, lambda s_=s_: g(s_)))
    if opt.hs_late:
        for j in range(32):
            fills.append((58 * 16, 10 ** 9, lambda j=j: g(f"v_accvgpr_write_b32 {HA[j]}, {HP[j//4][j%4]}")))
    ex = {}
    if opt.stamps:
        for h, nm in ((16, "g1"), (33, "g2"), (48, "q1")) + tuple((h_, f"p{h_}") for h_ in opt.gq_stamps):
            ex[16 * h - 1] = [lambda nm=nm: stamp(k, R, nm)]
    e2 = q_epi(2)
    if opt.hoist:
        ex.setdefault(63 * 16 + 3, []).extend([lambda: g.wait_vm(lambda t: t == ("K", 0)), lambda: g("s_barrier")])
        kr = [op for n in range(-8, 0) for op in at.read_ops(g, R, cfg, n)]

        def two(a, b):
            a()
            b()
            return 2
        for j, w_ in enumerate((5, 8, 9, 12)):
            fills.append((63 * 16 + w_, 63 * 16 + w_ + 1, lambda j=j: two(kr[2 * j], kr[2 * j + 1])))
        for _ in range(4):
            fills.append((63 * 16 + 13, 10 ** 9, lambda s_=e2.pop(0): g(s_)))
    g(f"s_cmp_lg_u32 {sskip}, 0")
    g("s_cbranch_scc1 L_skipG")
    if opt.ln_lead:
        lead_reads(k, P, AF)
    g.wait_lgkm(lambda t: t == ("W",))
    g("s_barrier")
    stamp(k, R, "ln")
    for qb in range(4):
        tg, txt = bread(0, qb)
        g.ds(txt, tg)
    rest = stream(k, R, P, AF, w2, w1, fills, ex, led=opt.ln_lead)
    assert not rest
    stamp(k, R, "q2")
    if not opt.hoist:
        g.wait_vm(lambda t: t == ("K", 0))
        g("s_barrier")
        for n in range(-8, 0):
            for op in at.read_ops(g, R, cfg, n):
                op()
    for j, it in enumerate(kv_piece("V", 2 if opt.hs_late else 1).items(g, R)):
        emit(it.setup)
        n_ = -(-len(e2) // (4 - j))
        emit(e2[:n_])
        del e2[:n_]
        it.fn()
    e3 = q_epi(3)
    mx = [tmp[j] for j in range(4)]
    mt = [tm2[j] for j in range(4)]
    g(f"s_cmp_lg_u32 {sslow}, 0")
    g("s_cbranch_scc1 L_maxpass")

    def qk0(kk):
        for kb in range(2):
            for qb in range(4):
                n = -8 + 4 * kb + kk
                Sx = R.S[0][qb][4 * kb:4 * kb + 4]
                g.wait_lgkm(lambda t: t[0] == "F" and t[1] <= n)
                g(f"{MF} {Sx}, {at.fbuf(R, n)}, {R.Q[kk][qb]}, {'0' if kk == 0 else Sx}")
                for _ in range(2):
                    if e3:
                        g(e3.pop(0))
    lg_save = list(g.lgkm)
    qk0(0)
    qk0(1)
    qk0(2)
    assert not e3
    g("s_nop 0")
    qk0(3)
    for n in range(8, 13):
        for op in at.read_ops(g, R, cfg, n):
            op()
    g("s_nop 2")
    for qb in range(4):
        Sx = R.S[0][qb]
        g(f"v_max3_f32 {mx[qb]}, {Sx[0]}, {Sx[1]}, {Sx[2]}")
        g(f"v_max3_f32 {mx[qb]}, {mx[qb]}, {Sx[3]}, {Sx[4]}")
        g(f"v_max3_f32 {mx[qb]}, {mx[qb]}, {Sx[5]}, {Sx[6]}")
        g(f"v_max_f32 {mx[qb]}, {mx[qb]}, {Sx[7]}")
    emit(reduce_G_ops(mx, mt, "v_max_f32"))
    g.label("L_havemax")
    stamp(k, R, "qk0")
    for qb in range(4):
        for j in range(2):
            g(f"v_sub_f32 {R.negm[qb][j]}, 0, {mx[qb]}")
        g(f"v_mov_b64 {R.negm[qb][2:4]}, {R.negm[qb][0:2]}")
        for j in range(0, 8, 2):
            g(f"v_pk_add_f32 {R.S[0][qb][j:j+2]}, {R.S[0][qb][j:j+2]}, {R.negm[qb][0:2]}")
    if opt.hybrid:
        g(f"v_mov_b32 {R.lv[0]}, 0")
        g(f"v_mov_b32 {R.lv[1]}, 0")
    if opt.tlb:
        if opt.tlb_sh2 == 20:
            touch(tmp[1], ("HS", 0), [(R.srdWS, "0", 24 << 20), (R.srdOUT, "0", 2 << 20), (R.srdWD, "0", 1792 * 1024), (R.srdWO, "0", 1 << 19)], 20)
        else:
            g(f"s_mul_i32 {R.stmp}, {R.sp}, {56*4096}")
            g(f"s_lshl_b32 {R.stmp2}, {R.sp}, 19")
            g(f"s_add_u32 {R.stmp2}, {R.stmp2}, {SP_BASE}")
            touch(tmp[1], ("HS", 0), [(R.srdWS, R.stmp, 56 * 4096), (R.srdWS, R.stmp2, 1 << 19), (R.srdOUT, sxo, 1), (R.srdWD, "0", 1792 * 1024), (R.srdWO, "0", 1 << 19)], opt.tlb_sh2)
    npre = 8 - cfg.G0 // 4
    for p_ in range(npre):
        for j in range(2):
            r_ = R.S[0][p_ // 4][2 * (p_ % 4) + j]
            g(f"v_exp_f32 {r_}, {r_}")
    g("s_nop 0")
    for p_ in range(npre):
        S_ = R.S[0][p_ // 4]
        j = 2 * (p_ % 4)
        g(f"v_cvt_pk_bf16_f32 {S_[j//2]}, {S_[j]}, {S_[j+1]}")
        R.done[(0, p_ // 4)] = R.done.get((0, p_ // 4), 0) + 1
    hsa = [(clo(h_store(j).setup), h_store(j).fn) for j in range(8)]
    at.emit_step(g, R, cfg, 0, groups=range(8, 16), alt=hsa[:4] if opt.hs_late else kv_piece("K", 2).alt(g, R), alt_groups=[8, 9, 10, 11])
    g(f"s_mov_b32 {R.sloop}, 0")
    g(f"s_or_b32 {ssig}, {R.swave}, {sslow}")
    v2 = kv_piece("V", 2).alt(g, R)
    x1 = {(1 + 2 * j, 4): [v2[j][1]] for j in range(2)}
    x1[(0, 0)] = v2[0][0]
    x1[(2, 0)] = [v2[2][1]]
    x1[(4, 0)] = [v2[3][1], lambda: g(f"s_mov_b32 {R.stile}, {3*U}")]
    if opt.hybrid:
        k3 = kv_piece("K", 3).alt(g, R)
        f4 = hsa[4:] if opt.hs_late else v2
        x1 = {(1 + 2 * j, 4): [f4[j][1]] for j in range(4)}
        x1[(0, 0)] = f4[0][0]
        x1[(8, 0)], x1[(9, 0)] = k3[0][0][:1], k3[0][0][1:]
        x1[(13, 0)], x1[(14, 0)] = [k3[2][1]], [k3[3][1]]
        at.emit_step(g, R, cfg, 1, first_pv=True, dma=False, xtra=x1, alt=[([], k3[0][1]), ([], k3[1][1])], alt_groups=[11, 12])
    if opt.hs_late and not opt.hybrid:
        x1 = {(1 + 2 * j, 4): [hsa[4 + j][1]] for j in range(4)}
        x1[(0, 0)] = hsa[4][0]
        x1[(1, 0)] = [lambda: g(f"s_mov_b32 {R.stile}, {3*U}")]
    if not opt.hybrid:
        at.emit_step(g, R, cfg, 1, first_pv=True, xtra=x1)
    g.vm = [t for t in g.vm if t[0] != "HS"]
    st_l, st_v = list(g.lgkm), list(g.vm)
    stamp(k, R, "attn0")
    g.lgkm = list(st_l)
    g.raw(f".p2align {opt.align}")
    g.label("L_loop")
    for i in range(2, 10):
        at.emit_step(g, R, cfg, i)
    sh = lambda q, d: [(t[0], t[1] - d) for t in q]
    assert sh(g.lgkm, 128) == st_l, (g.lgkm, st_l)
    assert sh(g.vm, 4) == st_v, (g.vm, st_v)
    assert not R.pend
    NIT = 7 - opt.peel
    g(f"s_or_b32 {R.stmp}, {R.sloop}, {ssig}")
    g("s_cbranch_scc0 L_signal")
    g.label("L_signalled")
    g(f"s_add_u32 {R.sloop}, {R.sloop}, 1")
    g(f"s_cmp_lt_u32 {R.sloop}, {NIT}")
    g("s_cbranch_scc1 L_loop")
    g.lgkm = [(t[0], t[1] + 128 * (NIT - 1)) for t in g.lgkm]
    g.vm = [(t[0], t[1] + 4 * (NIT - 1)) for t in g.vm]
    R.done = {(h_ + 8 * (NIT - 1), q_): c_ for (h_, q_), c_ in R.done.items()}
    st_l = list(g.lgkm)
    stamp(k, R, "loop")
    g.lgkm = st_l
    g.vmem(f"buffer_load_dword {vpoll}, off, {R.srdDBG}, {sdb} offset:4 sc1", ("POLL",))
    r14 = R.stmp2
    sc = [f"s_lshl_b32 {sO}, {R.swave}, 1", f"s_add_u32 {sO}, {sO}, {spar}", f"s_lshl_b32 {sSP}, {R.sp}, 3", f"s_add_u32 {sSP}, {sSP}, {sO}",
          f"s_lshl_b32 {sSP}, {sSP}, 3", f"s_add_u32 {sSP}, {sSP}, {R.skvh}", f"s_lshl_b32 {sSP}, {sSP}, 13", f"s_add_u32 {sSP}, {sSP}, {SP_BASE}",
          f"s_lshl_b32 {sO}, {sO}, 7", f"s_lshl_b32 {R.stmp}, {srot}, 15", f"s_add_u32 {sO}, {sO}, {R.stmp}",
          f"s_add_u32 {r14}, {srot}, {spar}", f"s_cmp_ge_u32 {r14}, 14", f"s_cselect_b32 {R.stmp}, 14, 0", f"s_sub_u32 {r14}, {r14}, {R.stmp}",
          f"s_mul_i32 {sDb}, {R.swave}, {14*32768}", f"s_lshl_b32 {R.stmp}, {R.skvh}, 7", f"s_add_u32 {sDb}, {sDb}, {R.stmp}",
          f"s_add_u32 {sDl}, {sDb}, {14*32768}", f"s_lshl_b32 {sD}, {r14}, 15", f"s_add_u32 {sD}, {sD}, {sDb}",
          f"s_mul_i32 {sHb}, {R.sp}, {56*4096}", f"s_mul_i32 {R.stmp}, {R.swave}, {14*4096}", f"s_add_u32 {sHb}, {sHb}, {R.stmp}",
          f"s_add_u32 {sHl}, {sHb}, {14*4096}", f"s_lshl_b32 {sH}, {r14}, 12", f"s_add_u32 {sH}, {sH}, {sHb}"]

    def od_piece(h):
        u = RING_OD[h % 6]
        if h < 32:
            su = [f"s_add_u32 {sO}, {sO}, 32768", f"s_and_b32 {sO}, {sO}, {(1<<19)-1}"] if h else []
            if h == 16:
                su.append(f"s_xor_b32 {sO}, {sO}, 128")
            return Piece(("WO", h), u, R.srdWO, voffS, sO, su)
        j = h - 32
        su = [f"s_add_u32 {sD}, {sD}, 32768", f"s_cmp_lt_u32 {sD}, {sDl}", f"s_cselect_b32 {sD}, {sD}, {sDb}"] if j else []
        return Piece(("WO", h), u, R.srdWD, voffS, sD, su)

    vh = [vhoff, tm2[0], tm2[1], tm2[2]]

    def h_item(j, qb):
        su = [f"s_add_u32 {sH}, {sH}, 4096", f"s_cmp_lt_u32 {sH}, {sHl}", f"s_cselect_b32 {sH}, {sH}, {sHb}"] if (qb == 0 and j) else []
        return Item(su, lambda: g.vmem(f"buffer_load_dwordx4 {HB(j, qb)}, {vh[qb]}, {R.srdWS}, {sH} offen sc1", ("H", j)))
    h_alt = lambda j, qb: (clo(h_item(j, qb).setup), h_item(j, qb).fn)

    def poll_h():
        g.wait_vm(lambda t: t == ("POLL",))
        g(f"v_readfirstlane_b32 {R.stmp}, {vpoll}")
        g("s_nop 0")
        g(f"s_cmp_ge_u32 {R.stmp}, 8")
        g("s_cbranch_scc0 L_spin_h")
        g.label("L_h_ok")
    xt = {}
    slots = [(gp, w) for gp in range(16) for w in (0, 3, 4) if (gp, w) != (cfg.BAR, 0) and (w != 4 or gp in cfg.ones_groups)]
    slots = sorted(slots + [(gp, 4) for gp in cfg.ones_groups] * 2 + [(gp, 1) for gp in (11, 12)] * 2)
    if opt.hybrid:
        slots = [(gp, w) for gp in range(16) for w in (0, 2, 3) if (gp, w) not in ((cfg.BAR, 0), (cfg.BAR - 1, 2), (15, 2), (15, 3), (cfg.hyb_groups[0], 0), (14, 0))]
        slots = sorted(slots + [(8, 1), (9, 1)])
    for qb in range(4):
        sc += [f"s_add_u32 {R.stmp}, {R.swave}, {qb}", f"s_and_b32 {R.stmp}, {R.stmp}, 3", f"s_lshl_b32 {R.stmp}, {R.stmp}, 10",
               f"v_add_u32 {vh[qb]}, {R.stmp}, {voff16}"]
    assert len(sc) < len(slots)
    for j, s_ in enumerate(sc):
        xt.setdefault(slots[j], []).append(lambda s_=s_: g(s_))
    xt.setdefault((15, 2), []).append(poll_h)
    S0 = 2 + 8 * NIT
    at.emit_step(g, R, cfg, S0, xtra=xt)
    def h_lds(j, qb):
        su = h_item(j, qb).setup + [f"s_add_u32 m0, {R.swoff}, {(j-JL)*U+qb*1024}"]
        return (clo(su), lambda: g.vmem(f"buffer_load_dwordx4 {vh[qb]}, {R.srdWS}, {sH} offen sc1 lds", ("HL", j)))
    hq = [(h_lds if j in (JL, JL + 1) else h_alt)(j, qb) for j in range(10) for qb in range(4)]
    if opt.touch:
        tw = [f"s_and_b32 {R.stmp}, {R.sp}, {(32 >> hb) - 1}", f"s_mul_i32 {R.stmp}, {R.stmp}, {(14 << hb) * 1024}", f"s_add_u32 {R.stmp}, {R.stmp}, {sDb}",
              f"v_lshrrev_b32 {tmp[0]}, 1, {lane}", f"v_and_b32 {tmp[1]}, 1, {lane}", f"v_lshlrev_b32 {tmp[1]}, 6, {tmp[1]}", f"v_lshl_add_u32 {tmp[0]}, {tmp[0]}, 10, {tmp[1]}"]
        hq.insert(0, (clo(tw), lambda: g.vmem(f"buffer_load_dword {tmp[1]}, {tmp[0]}, {R.srdWD}, {R.stmp} offen", ("PF",))))
    xres = Reg("v", 224, 8)
    hq += [(clo([f"s_lshl_b32 {R.stmp}, {R.skvh}, 7", f"s_add_u32 {sxo}, {sxo}, {R.stmp}"] if nb == 0 else []),
            lambda nb=nb: g.vmem(f"buffer_load_dwordx2 {xres[2*nb:2*nb+2]}, {voffx}, {R.srdX}, {sxo} offen offset:{nb*32}", ("X", 99))) for nb in range(4)]
    steps = list(range(S0 + 1, 63))
    for i in steps:
        xo = {}
        alt, ag = [], []
        if i in (59, 61):
            alt, ag = od_piece(i - 59).alt(g, R) + od_piece(i - 58).alt(g, R), list(cfg.dma_groups)
        if i == 62:
            alt, ag = od_piece(4).alt(g, R), [8, 9, 10, 11]
        n = opt.h_plan[i - 51]
        for gp in cfg.og(i):
            if n:
                su, op = hq.pop(0)
                free = [(gp - 1, 0), (gp, 0), (gp - 1, 3), (gp, 3), (gp, 2)] if i % 2 == 0 or gp < 5 else [(gp - 1, 0), (gp - 1, 2), (gp, 2)]
                free = sorted(free[:max(len(su), 1)])
                for j_, f_ in enumerate(su):
                    xo.setdefault(free[min(j_, len(free) - 1)], []).append(f_)
                xo.setdefault((gp, 4), []).append(op)
                n -= 1
        while n:
            assert i % 2 == 0
            alt.append(hq.pop(0))
            ag.append([gp for gp in (8, 9, 10, 11, 12, 7, 6, 5) if gp not in ag][0])
            n -= 1
        if opt.tail_stamps and i % 2 == 0:
            keep = list(g.lgkm)
            stamp(k, R, f"s{i}")
            g.lgkm = keep
        assert ag == sorted(ag)
        vl = clo(reduce_G_ops(R.lv, [tmp[2], tmp[3]], "v_add_f32")) if (opt.hybrid and i == 54) else None
        at.emit_step(g, R, cfg, i, alt=alt, alt_groups=ag, xtra=xo, valu=vl)
        assert not vl
    if opt.tail_stamps:
        keep = list(g.lgkm)
        stamp(k, R, "s63")
        g.lgkm = keep
    assert not hq
    hs = [(j, qb) for j in range(10, 14) for qb in range(4)]
    lastbuf = lambda db: at.fbuf(R, 8 + db)
    rd_over = {gp: [] for gp in range(5, 16)}
    x63 = {(0, 0): [lambda: g.wait_vm(lambda t: t[0] == "HL")], (4, 0): [lambda: g(f"v_add_u32 {vpoll}, {R.swoff}, {voff16}")]}
    for db, (gp, w_) in enumerate([(1, 4), (3, 4), (5, 1), (5, 4), (6, 1), (7, 1), (7, 4), (8, 1)]):
        ops = at.read_ops(g, R, cfg, 1024 + db, lastbuf(db))
        if w_ == 4:
            x63[(gp, 4)] = ops
        else:
            rd_over[gp] += ops
    h_back = lambda j, qb: g.ds(f"ds_read_b128 {HB(j, qb)}, {vpoll} offset:{(j-JL)*U+qb*1024}", ("HB", j))
    for qb in range(4):
        rd_over[12 + qb // 2].append(lambda qb=qb: h_back(JL, qb))
    mf_over = {}
    order = [(0, 0), (1, 0), (0, 1), (1, 1), (2, 0), (2, 1), (3, 0), (3, 1)]
    for gi, (qb, dh) in enumerate(order):
        for w4 in range(4):
            db = 4 * dh + w4
            mf_over[32 + 4 * gi + w4] = (1024 + db, f"{MF} {R.O[db][qb]}, {lastbuf(db)}, {R.S[1][qb][0:4]}, {R.O[db][qb]}")
    ones_over = {gp: at.ones_mfma(R, 62, q_, False) for q_, gp in enumerate(cfg.ones_groups)}
    ones_over.update({9 + q_: at.ones_mfma(R, 63, q_, False) for q_ in range(3)})
    RL = [R.negm[qb][0:2] for qb in range(4)]
    vv = [f"s_lshl_b32 {R.stmp}, {R.swave}, 2", f"s_add_u32 {R.stmp}, {R.stmp}, {7*U}", f"v_lshl_add_u32 {R.negm[0][2]}, {lane}, 12, {R.stmp}"]
    if opt.hybrid:
        vv += [f"v_add_f32 {R.lv[0]}, {R.lv[0]}, {R.l[0]}", f"v_add_f32 {R.lv[1]}, {R.lv[1]}, {R.l[2]}"]
        R.l = [R.lv[0], R.l[1], R.lv[1], R.l[3]]
    vv += [f"v_add_f32 {R.negm[1][2]}, {R.l[0]}, {R.l[1]}", f"v_add_f32 {R.negm[2][2]}, {R.l[2]}, {R.l[3]}", f"v_add_f32 {R.negm[1][2]}, {R.negm[1][2]}, {R.negm[2][2]}"]
    vv += [f"v_cmp_nge_f32 vcc, {fbits(L_LIMIT if not opt.force_slow else -1.0)}, {R.negm[1][2]}"]
    vcl = clo(vv)
    nh = opt.h63
    h63 = [h_alt(*x) for x in hs[:nh]]
    x14 = {}
    for gp, w_ in [(8, 3), (9, 4), (10, 3), (10, 4), (11, 3), (11, 4), (14, 0), (14, 2)]:
        if h63:
            su, op = h63.pop(0)
            if gp == 14:
                x14[(14, w_)] = su + [op]
            elif w_ == 4:
                assert not (su and (gp, 3) in x63)
                x63.setdefault((gp, 2), []).extend(su)
                x63[(gp, 4)] = [op]
            else:
                x63[(gp, 3)] = (su, op)
    assert not h63
    ag = [gp for gp in range(16) if (gp, 3) in x63]
    al = [x63.pop((gp, 3)) for gp in ag]
    at.emit_step(g, R, cfg, 63, groups=range(14), alt=al, alt_groups=ag, xtra=x63, mf_over=mf_over, rd_over=rd_over, ones_over=ones_over)
    assert not R.pend
    g("s_nop 1")
    g(at.ones_mfma(R, 63, 3, False))
    at.emit_step(g, R, cfg, 63, groups=[14], xtra=x14, mf_over=mf_over, rd_over={14: [(lambda qb=qb: h_back(JL + 1, qb)) for qb in range(4)]}, ones_over={})
    at.emit_step(g, R, cfg, 63, groups=[15], mf_over=mf_over, rd_over=rd_over, ones_over={}, valu=vcl)
    for f in vcl:
        f()
    for qb in range(4):
        g(f"v_rcp_f32 {RL[qb][0]}, {R.l[qb]}")
    g(f"s_cmp_lg_u64 vcc, 0")
    g(f"s_cselect_b32 {R.stmp}, 1, 0")
    g(f"s_andn2_b32 {R.stmp}, {R.stmp}, {sslow}")
    g(f"v_mov_b32 {R.negm[1][2]}, {R.stmp}")
    g("s_mov_b64 exec, 15")
    g.ds(f"ds_write_b32 {R.negm[0][2]}, {R.negm[1][2]}", ("ST",))
    g("s_mov_b64 exec, -1")
    for qb in range(4):
        g(f"v_mov_b32 {RL[qb][1]}, {RL[qb][0]}")
    g(f"s_lshl_b32 {R.stmp2}, {R.swave}, 2")
    g(f"s_sub_u32 {R.stmp2}, {R.stmp2}, {srot}")

    def barrier_a():
        g.wait_lgkm(lambda t: t[0] in ("HB", "F"))
        g("s_barrier")
        stamp(k, R, "attn")
    if not opt.trim:
        barrier_a()

    def o_mul(u, qb):
        for b in range(2):
            O = R.O[2 * u + b][qb]
            g(f"v_pk_mul_f32 {O[0:2]}, {O[0:2]}, {RL[qb]}")
            g(f"v_pk_mul_f32 {O[2:4]}, {O[2:4]}, {RL[qb]}")

    def o_cvt(u, qb):
        O0, O1 = R.O[2 * u][qb], R.O[2 * u + 1][qb]
        g(f"v_cvt_pk_bf16_f32 {O0[0]}, {O0[0]}, {O0[1]}")
        g(f"v_cvt_pk_bf16_f32 {O0[1]}, {O0[2]}, {O0[3]}")
        g(f"v_cvt_pk_bf16_f32 {O0[2]}, {O1[0]}, {O1[1]}")
        g(f"v_cvt_pk_bf16_f32 {O0[3]}, {O1[2]}, {O1[3]}")
    vq = [h_item(*x) for x in hs[nh:]]
    for u in range(4):
        g(f"s_and_b32 {R.stmp}, {R.stmp2}, 15")
        g(f"s_lshl_b32 {R.stmp}, {R.stmp}, 12")
        g(f"v_add_u32 {lq[u]}, {R.stmp}, {voff16}")
        g(f"s_add_u32 {R.stmp2}, {R.stmp2}, 1")
    prev = None
    for qb in range(4):
        for u in range(4):
            if vq and u & 1:
                it = vq.pop(0)
                emit(it.setup)
                it.fn()
            o_mul(u, qb)
            if opt.trim and (qb, u) == (0, 1):
                barrier_a()
            if prev and opt.wr_delay:
                g.ds(prev, ("W",))
            o_cvt(u, qb)
            prev = f"ds_write_b128 {lq[u]}, {R.O[2*u][qb]} offset:{qb*1024}"
            if not opt.wr_delay or (qb, u) == (3, 3):
                g.ds(prev, ("W",))
            if len(g.lgkm) >= 14:
                g("s_waitcnt lgkmcnt(8)")
                g.lgkm = g.lgkm[-8:]
    assert not vq
    g(f"s_add_u32 {R.stmp}, {R.swoff}, {7*U}")
    g(f"v_mov_b32 {vpoll}, {R.stmp}")
    ST = Reg("v", 64, 4)

    def obread(h, qb):
        return (("B", h, qb), f"ds_read_b128 {BF[((h&1)*4+qb)*4:((h&1)*4+qb)*4+4]}, {voff16} offset:{((h&15)*4+qb)*1024}")
    P = []
    for h in range(46):
        if h < 32:
            P.append(PSpec(RING_OD[h % 6], ("WO", h), trS, True,
                           (lambda nb, qb, h=h: (ACC(4 * (h >> 4) + nb, qb), (h & 15) == 0)),
                           (lambda qb, h=h: (BF[((h & 1) * 4 + qb) * 4:((h & 1) * 4 + qb) * 4 + 4], ("B", h, qb))),
                           [obread(h + 1, qb) for qb in range(4)] if h < 31 else []))
        else:
            P.append(PSpec(RING_OD[h % 6], ("WO", h), trS, True,
                           (lambda nb, qb, h=h: (DACC(nb, qb), h == 32)),
                           (lambda qb, h=h: (HB(h - 32, qb), None))))
    fills = []

    def p_store(s, i):
        qb, u = divmod(i, 2)
        A_ = ACC(4 * s + 2 * u, qb)
        o = ((qb & 1) * 2 + u) * 1024
        off = f" offset:{o}" if o else ""
        su = [f"s_add_u32 {sSP}, {sSP}, 4096"] if i == 4 else [f"s_sub_u32 {sSP}, {sSP}, 4096", f"s_xor_b32 {sSP}, {sSP}, 65536"] if (i == 0 and s) else []
        if opt.diag_st == "none":
            return Item(su, lambda: g("s_nop 0"))
        return Item(su, lambda: g.vmem(f"buffer_store_dwordx4 {A_}, {voff16}, {R.srdWS}, {sSP} offen{off}{opt.diag_st}", ("SS",)))

    def p_cvt(s, i, e, l):
        qb, u = divmod(i, 2)
        A_, B_ = ACC(4 * s + 2 * u, qb), ACC(4 * s + 2 * u + 1, qb)
        for s_ in [f"v_cvt_pk_bf16_f32 {A_[0]}, {A_[0]}, {A_[1]}", f"v_cvt_pk_bf16_f32 {A_[1]}, {A_[2]}, {A_[3]}",
                   f"v_cvt_pk_bf16_f32 {A_[2]}, {B_[0]}, {B_[1]}", f"v_cvt_pk_bf16_f32 {A_[3]}, {B_[2]}, {B_[3]}"]:
            fills.append((e, l, lambda s_=s_: g(s_)))
    ins = {}
    w1 = {}
    w2 = {}
    q = [it for h in range(5, 46) for it in od_piece(h).items(g, R)]
    poll_item = Item([], lambda: g.vmem(f"buffer_load_dword {vpoll}, {tm2[0]}, {R.srdWS}, {spl} offen sc1", ("POLL",)))
    if opt.st_late:
        g0 = len(q)
        ins[g0] = poll_item
        n0 = 16 - opt.st_late
        for i in range(n0):
            gp = opt.st1_group + opt.st1_step * i
            w1[gp] = p_store(0, i)
            p_cvt(0, i, 64 * 4 + 2, 4 * gp + 1)
        for j in range(n0, 16):
            gp = g0 + 1 + j - n0
            ins[gp] = p_store(j // 8, j % 8)
            p_cvt(j // 8, j % 8, (64 << (j // 8)) * 4 + 2, 4 * gp + 2)
    else:
        for i in range(8):
            gp = opt.st1_group + opt.st1_step * i
            w1[gp] = p_store(0, i)
            p_cvt(0, i, 64 * 4 + 2, 4 * gp + 1)
        for i in range(8):
            gp = 128 + 1 + opt.st2_step * i
            (ins if opt.d_fifo else w1)[gp] = p_store(1, i)
            p_cvt(1, i, 128 * 4 + 2, 4 * gp + (2 if opt.d_fifo else 1))
    gp, nx, nxt = 0, 0, 1
    while q or ins:
        if nx and gp >= nxt and gp % 2 and not q[1].setup:
            w1[gp] = q.pop(0)
            nx, nxt = nx - 1, nxt + opt.o_catch
        w2[gp] = ins.pop(gp) if gp in ins else q.pop(0)
        gp += 1
    flag_group = opt.flag_group
    early_poll = not opt.st_late
    sp = Reg("v", 0, 64) if early_poll else Reg("a", 128, 64)
    smask, soob, snew = sO, sHb, sDl

    def sp_item(src, u, dst=None):
        su = [f"s_bitcmp1_b32 {smask}, {src}", f"s_cselect_b32 {R.stmp2}, {sSL}, {soob}", f"s_add_u32 {sSL}, {sSL}, 8192"] if u == 0 else []
        off = f" offset:{u*1024}" if u else ""
        return Item(su, lambda: g.vmem(f"buffer_load_dwordx4 {spv[src*8+u*4:src*8+u*4+4]}, {voff16}, {R.srdWS}, {R.stmp2} offen{off} sc1", ("SP", src)))
    spv = Reg("v", 0, 64)

    def look():
        g.wait_vm(lambda t: t == ("POLL",))
        g(f"v_cmp_eq_u32 vcc, 1, {vpoll}")
        g(f"s_lshl_b32 {smask}, 1, {R.skvh}")
        g(f"s_mov_b32 {soob}, {256 << 20}")
        if early_poll:
            g(f"s_or_b32 {smask}, {smask}, vcc_lo")
        else:
            g(f"s_andn2_b32 {smask}, vcc_lo, {smask}")
        g(f"s_and_b32 {smask}, {smask}, 255")
    if early_poll:
        (w2 if opt.poll_group >= gp else w1)[opt.poll_group] = poll_item
        assert opt.look_group + 1 >= gp and opt.look_group > flag_group + 1
        if opt.sp_in:
            ng = 183 - opt.look_group
            two = opt.sp_n - ng
            sl = []
            for j in range(ng):
                if j >= ng - two:
                    sl.append((opt.look_group + 1 + j, 0))
                sl.append((opt.look_group + 1 + j, 1))
            assert len(sl) == opt.sp_n
            for j, (gp_, w_) in enumerate(sl):
                it = sp_item(j // 2, j % 2)
                assert not (w_ and gp_ in w1 and it.setup)
                (w2 if w_ else w1)[gp_] = it

    def set_flag():
        stamp(k, R, "preflag")
        g.wait_vm(lambda t: t == ("SS",))
        g(f"v_mov_b32 {vpoll}, 1")
        g("s_mov_b64 exec, 1")
        g.vmem(f"buffer_store_dword {vpoll}, off, {R.srdWS}, {sfl} sc1", ("FL",))
        g("s_mov_b64 exec, -1")
        stamp(k, R, "acked")
    post = [f"s_lshl_b32 {spl}, {R.sp}, 2", f"s_lshr_b32 {R.stmp}, {R.skvh}, 1", f"s_add_u32 {spl}, {spl}, {R.stmp}",
            f"s_lshl_b32 {spl}, {spl}, 5", f"s_add_u32 {spl}, {spl}, {FL_BASE}",
            f"v_and_b32 {tm2[0]}, 7, {lane}", f"v_lshlrev_b32 {tm2[0]}, 2, {tm2[0]}",
            f"s_lshl_b32 {sSL}, {R.sp}, 3", f"s_add_u32 {sSL}, {sSL}, {R.skvh}", f"s_lshl_b32 {sSL}, {sSL}, 16",
            f"s_lshl_b32 {R.stmp}, {R.swave}, 11", f"s_add_u32 {sSL}, {sSL}, {R.stmp}", f"s_add_u32 {sSL}, {sSL}, {SP_BASE}"]
    for qb in range(1, 4):
        post += [f"s_add_u32 {R.stmp}, {R.swave}, {qb}", f"s_and_b32 {R.stmp}, {R.stmp}, 3", f"s_lshl_b32 {R.stmp}, {R.stmp}, 14",
                 f"v_add_u32 {tm2[qb]}, {R.stmp}, {voff16}"]
    fw = 4 * flag_group + 1
    IDF = Reg("a", 72, 6)
    if opt.mfma_sum:
        t0_, t1_, t2_, t3_ = [f"v{64+j}" for j in range(4, 8)]
        post += [f"v_bfe_u32 {t0_}, {lane}, 2, 2", f"v_lshrrev_b32 {t1_}, 4, {lane}", f"v_cmp_eq_u32 vcc, {t0_}, {t1_}",
                 f"v_and_b32 {t0_}, 1, {lane}", f"v_lshlrev_b32 {t0_}, 4, {t0_}", f"v_mov_b32 {t1_}, 0x3f80", f"v_lshlrev_b32 {t1_}, {t0_}, {t1_}",
                 f"v_cndmask_b32 {t1_}, 0, {t1_}, vcc", f"v_and_b32 {t0_}, 2, {lane}", f"v_cmp_eq_u32 vcc, 0, {t0_}", f"v_accvgpr_write_b32 {IDF[0]}, 0",
                 f"v_accvgpr_write_b32 {IDF[1]}, 0", f"v_cndmask_b32 {t2_}, 0, {t1_}, vcc", f"v_cndmask_b32 {t3_}, {t1_}, 0, vcc",
                 f"v_accvgpr_write_b32 {IDF[4]}, 0", f"v_accvgpr_write_b32 {IDF[5]}, 0", f"v_accvgpr_write_b32 {IDF[2]}, {t2_}", f"v_accvgpr_write_b32 {IDF[3]}, {t3_}"]
    fills = [(8, 250, lambda s_=s_: g(s_)) for s_ in post] + fills

    XR = Reg("v", 112, 16)
    for d in range(8):
        fills.append((4 * (flag_group + 2), 10 ** 9, lambda d=d: g(f"v_lshlrev_b32 {XR[2*d]}, 16, {xres[d]}")))
        fills.append((4 * (flag_group + 2), 10 ** 9, lambda d=d: g(f"v_and_b32 {XR[2*d+1]}, 0xffff0000, {xres[d]}")))

    def red_write(nb, qb):
        g.ds(f"ds_write_b128 {tm2[qb]}, {DACC(nb, qb)} offset:{(qb*4+nb)*1024}", ("W",))
        return 2
    for nb in range(2):
        for qb in range(1, 4):
            fills.append((45 * 16 + 4 * nb + qb + 7, 10 ** 9, lambda nb=nb, qb=qb: red_write(nb, qb)))
    ex = {fw: [set_flag] if early_poll else [], 4 * opt.look_group + 2: [look], fw + 6: [lambda: g("s_barrier")],
          4 * 127 + 3: [lambda: g.wait_vm(lambda t: t[0] == "H")]}
    if opt.stamps:
        ex.setdefault(16 * 16 - 1, []).append(lambda: stamp(k, R, "o1"))
        ex.setdefault(32 * 16 - 1, []).append(lambda: stamp(k, R, "o2"))
        for h_ in opt.od_stamps:
            ex.setdefault(h_ * 16 - 1, []).append(lambda h_=h_: stamp(k, R, f"d{h_}"))
    if opt.trim:
        lead_reads(k, P, AF)
    g.wait_lgkm(lambda t: t[0] in ("W", "ST"))
    g("s_barrier")
    stamp(k, R, "oepi")
    g.ds(f"ds_read_b128 {ST}, {vpoll}", ("ST",))
    for qb in range(4):
        tg, txt = obread(0, qb)
        g.ds(txt, tg)

    def range_check():
        g.wait_lgkm(lambda t: t == ("ST",))
        g(f"v_or_b32 {ST[0]}, {ST[0]}, {ST[1]}")
        g(f"v_or3_b32 {ST[0]}, {ST[0]}, {ST[2]}, {ST[3]}")
        g("s_nop 0")
        g(f"v_readfirstlane_b32 {R.stmp}, {ST[0]}")
        g("s_nop 0")
        g(f"s_cmp_lg_u32 {R.stmp}, 0")
        g("s_cbranch_scc1 L_slow")
    rest = stream(k, R, P, AF, w2, w1, fills, ex, pre=range_check, led=opt.trim)
    stamp(k, R, "down")
    for _, _, f in rest:
        f()
    g("s_nop 2")
    for nb in range(2, 4):
        for qb in range(1, 4):
            red_write(nb, qb)

    if not (early_poll and opt.sp_in):
        for src in range(8):
            for u in range(2):
                it = sp_item(src, u)
                emit(it.setup)
                it.fn()
    stamp(k, R, "polled")
    SUM = Reg("v", 96 if opt.mfma_sum else 176, 16)

    def sum_mfmas():
        o = []
        for src in range(8):
            for u in range(2):
                for t_ in range(2):
                    D_ = SUM[4 * (2 * u + t_):4 * (2 * u + t_) + 4]
                    o.append((src, f"{MF} {D_}, {IDF[2-2*t_:6-2*t_]}, {spv[src*8+u*4:src*8+u*4+4]}, {D_ if src else '0'}"))
        return o
    g(f"v_lshl_add_u32 {tm2[1]}, {R.swoff}, 2, {voff16}")
    for src, txt in sum_mfmas()[:opt.sum_early]:
        g.wait_vm(lambda t: t == ("SP", src))
        g(txt)
    g.wait_lgkm0()
    g("s_barrier")
    for qb in range(1, 4):
        for nb in range(4):
            g.ds(f"ds_read_b128 {DACC(nb, qb)}, {tm2[1]} offset:{(qb*4+nb)*1024}", ("R", qb))
    if opt.sp_in:
        for j in range(opt.sp_n, 16):
            it = sp_item(j // 2, j % 2)
            emit(it.setup)
            it.fn()
    if opt.poll2:
        poll_item.fn()
    for src, txt in sum_mfmas()[opt.sum_early:opt.sum_early + opt.sum_mid]:
        g.wait_vm(lambda t: t == ("SP", src))
        g(txt)
    Bv = [Reg("v", 160 + j) for j in range(16)]
    E = [Reg("v", 176 + j) for j in range(16)]
    T = [Reg("v", 128 + j) for j in range(32)]
    if not early_poll:
        set_flag()
        g("s_barrier")
        g(f"s_sub_u32 {R.stmp}, {R.skvh}, 8")
        g(f"s_lshl_b32 {R.stmp}, {R.stmp}, 13")
        g(f"s_add_u32 {R.stmp}, {R.stmp}, {sSL}")
        for u in range(2):
            g.vmem(f"buffer_load_dwordx4 v[{64+4*u}:{67+4*u}], {voff16}, {R.srdWS}, {R.stmp} offen offset:{u*1024} sc1", ("SP", 8))
        g(f"s_bitset1_b32 {smask}, {R.skvh}")
    g(f"s_mov_b32 {R.stmp2}, {fbits(-1.4426950408889634 / (C_SCALE * C_SCALE))}")
    g(f"s_mov_b32 {R.stmp}, {fbits(C_SCALE * C_SCALE)}")
    for qb in range(1, 4):
        g.wait_lgkm(lambda t: t[1] <= qb)
        for j in range(0, 16, 2):
            g(f"v_pk_add_f32 v[{160+j}:{161+j}], v[{160+j}:{161+j}], v[{160+16*qb+j}:{161+16*qb+j}]")
    act = [f"v_mul_f32 {E[j]}, {R.stmp2}, {Bv[j]}" for j in range(16)] + [f"v_exp_f32 {E[j]}, {E[j]}" for j in range(16)]
    act += [f"v_fma_f32 {E[j]}, {E[j]}, {R.stmp}, {R.stmp}" for j in range(16)]
    act += [f"v_rcp_f32 {E[j]}, {E[j]}" for j in range(16)]
    if opt.mfma_sum:
        act += [f"v_mul_f32 {Bv[j]}, {Bv[j]}, {E[j]}" for j in range(16)]
        rest_m = sum_mfmas()[opt.sum_early + opt.sum_mid:]
        for j, (src, txt) in enumerate(rest_m):
            g.wait_vm(lambda t: t == ("SP", src))
            g(txt)
            for _ in range(-(-len(act) // (len(rest_m) - j))):
                g(act.pop(0))
        emit(act)
    else:
        emit(act)
        g("s_nop 0")
        for j in range(0, 16, 2):
            g(f"v_pk_mul_f32 v[{160+j}:{161+j}], v[{160+j}:{161+j}], v[{176+j}:{177+j}]")
    stamp(k, R, "silu")

    def accumulate(base, first):
        for d in range(8):
            r = f"v{base+d}"
            if first:
                g(f"v_lshlrev_b32 {E[2*d]}, 16, {r}")
                g(f"v_and_b32 {E[2*d+1]}, 0xffff0000, {r}")
            else:
                g(f"v_lshlrev_b32 {T[16+2*d]}, 16, {r}")
                g(f"v_and_b32 {T[17+2*d]}, 0xffff0000, {r}")
                g(f"v_pk_add_f32 v[{176+2*d}:{177+2*d}], v[{176+2*d}:{177+2*d}], v[{144+2*d}:{145+2*d}]")
    assert early_poll
    g(f"s_mov_b32 {spin}, 0")
    g(f"s_cmp_lg_u32 {smask}, 255")
    g("s_cbranch_scc1 L_spin_s0" if opt.poll2 else "s_cbranch_scc1 L_spin_s")
    g.label("L_s_ok")
    stamp(k, R, "sok")
    if opt.mfma_sum:
        g("s_nop 1")
    else:
        for src in range(8):
            g.wait_vm(lambda t: t == ("SP", src))
            accumulate(8 * src, src == 0)
    if opt.out_x4:
        g(f"v_lshrrev_b32 {tm2[1]}, 4, {lane}")
        g(f"v_lshl_add_u32 {tm2[1]}, {tm2[1]}, 3, {voffx}")
    for nb in range(4):
        for j in range(4 * nb, 4 * nb + 4, 2):
            g(f"v_pk_fma_f32 v[{160+j}:{161+j}], v[{160+j}:{161+j}], {SUM[j:j+2]}, {XR[j:j+2]}")
        o_ = 128 + (2 * nb if opt.out_x4 else 4 * nb)
        g(f"v_cvt_pk_bf16_f32 v{o_}, {Bv[4*nb]}, {Bv[4*nb+1]}")
        g(f"v_cvt_pk_bf16_f32 v{o_+1}, {Bv[4*nb+2]}, {Bv[4*nb+3]}")
        if not opt.out_x4:
            g.vmem(f"buffer_store_dwordx2 v[{o_}:{o_+1}], {voffx}, {R.srdOUT}, {sxo} offen offset:{nb*32}{opt.out_mod}", ("OUT",))
    if opt.out_x4:
        g("s_nop 0")
        for sw in ("v_permlane32_swap_b32", "v_permlane16_swap_b32"):
            for u in range(2):
                for j in range(2):
                    g(f"{sw} v{128+4*u+j}, v{130+4*u+j}")
        for u in range(2):
            g.vmem(f"buffer_store_dwordx4 v[{128+4*u}:{131+4*u}], {tm2[1]}, {R.srdOUT}, {sxo} offen offset:{u*64}{opt.out_mod}", ("OUT",))
    stamp(k, R, "final")
    if opt.echo:
        a_, b_2, k_ = opt.echo
        g("s_nop 3")
        g(f"v_readlane_b32 {R.stmp}, v255, {k.names.index(a_)}")
        g(f"v_readlane_b32 {R.stmp2}, v255, {k.names.index(b_2)}")
        g(f"s_memrealtime {R.st2}")
        g("s_nop 3")
        g(f"s_sub_u32 {R.stmp}, {R.stmp2}, {R.stmp}")
        g(f"s_mul_i32 {R.stmp}, {R.stmp}, {k_}")
        g(f"s_min_u32 {R.stmp}, {R.stmp}, 100000")
        g("s_waitcnt lgkmcnt(0)")
        g.label("L_echo")
        g(f"s_memrealtime {R.st}")
        g("s_waitcnt lgkmcnt(0)")
        g(f"s_sub_u32 {R.stmp2}, {R.st[0]}, {R.st2[0]}")
        g(f"s_cmp_lt_u32 {R.stmp2}, {R.stmp}")
        g("s_cbranch_scc1 L_echo")
    if opt.dbgstamps:
        g("s_nop 3")
        for j, nm in enumerate(["start"] + list(opt.dbgstamps)):
            g(f"v_readlane_b32 {R.stmp}, v255, {k.names.index(nm)}")
            g("s_nop 3")
            if j == 0:
                g(f"s_not_b32 {R.stmp}, {R.stmp}")
            g(f"v_mov_b32 {tm2[0]}, {R.stmp}")
            g("s_mov_b64 exec, 1")
            g(f"buffer_atomic_umax {tm2[0]}, off, {R.srdDBG}, 0 offset:{4*j} sc1")
            g("s_mov_b64 exec, -1")
        g(f"s_getreg_b32 {R.stmp}, hwreg(HW_REG_XCC_ID, 0, 4)")
        g(f"s_and_b32 {R.stmp2}, s2, 7")
        g(f"s_lshl_b32 {R.stmp2}, {R.stmp2}, 2")
        g(f"s_lshl_b32 {R.stmp}, 1, {R.stmp}")
        g(f"s_cmp_eq_u32 {R.stmp2}, 0")
        g(f"s_cselect_b32 {R.stmp}, {R.stmp}, 0")
        g(f"v_mov_b32 {tm2[0]}, {R.stmp}")
        g("s_mov_b64 exec, 1")
        g(f"buffer_atomic_or {tm2[0]}, off, {R.srdDBG}, 0 offset:60 sc1")
        g("s_mov_b64 exec, -1")
    if opt.stamps:
        g(f"v_lshlrev_b32 {tm2[0]}, 3, {lane}")
        g(f"s_mov_b64 exec, 0xffffffff")
        g(f"buffer_store_dwordx2 v[254:255], {tm2[0]}, {R.srdWS}, {sst} offen")
    g("s_endpgm")

    g.label("L_skipG")
    g("s_waitcnt lgkmcnt(0)")
    g("s_barrier")
    g.lgkm = []
    g.vm = []
    for ks in range(16):
        for qb in range(4):
            tg, txt = bread(ks, qb)
            g.ds(txt, tg)
        if ks % 2 == 1:
            g.wait_lgkm0()
    for h in range(32 + opt.nfill, 37):
        gq_piece(h).emit_now(g, R)
    if opt.idle_pf:
        g(f"s_cmp_lg_u32 {sslow}, 0")
        g("s_cbranch_scc1 L_nopf")
        g(f"s_load_dwordx4 {R.srdOUT}, s[0:1], 8")
        g(f"s_lshl_b32 {R.stmp}, {R.sp}, 2")
        g(f"s_add_u32 {R.stmp}, {R.stmp}, {R.swave}")
        g(f"s_lshl_b32 {R.stmp2}, {R.stmp}, 15")
        for j in range(32):
            g(f"buffer_load_dwordx4 v[{4*(j%16)}:{4*(j%16)+3}], {voff16}, {R.srdWQ}, {R.stmp2} offen")
            g(f"s_add_u32 {R.stmp2}, {R.stmp2}, 1024")
        g(f"s_lshr_b32 {R.stmp2}, {R.stmp}, 4")
        g(f"s_lshl_b32 {R.stmp2}, {R.stmp2}, 19")
        g(f"s_and_b32 {R.stmp}, {R.stmp}, 15")
        g(f"s_lshl_b32 {R.stmp}, {R.stmp}, 12")
        g(f"s_add_u32 {R.stmp2}, {R.stmp2}, {R.stmp}")
        g(f"v_add_u32 {tmp[0]}, {R.stmp2}, {voff16}")
        g("s_waitcnt lgkmcnt(0)")
        for m_ in range(2):
            for j in range(4):
                g(f"global_load_dwordx4 v[{64+4*(4*m_+j)}:{67+4*(4*m_+j)}], {tmp[0]}, {R.srdOUT[2*m_:2*m_+2]} offset:{j*1024}")
        prev = 0
        for blk in opt.idle_more:
            g(f"v_add_u32 {tmp[0]}, {(blk - prev) * 65536}, {tmp[0]}")
            prev = blk
            for m_ in range(2):
                for j in range(4):
                    g(f"global_load_dwordx4 v[{64+4*(4*m_+j)}:{67+4*(4*m_+j)}], {tmp[0]}, {R.srdOUT[2*m_:2*m_+2]} offset:{j*1024}")
        if opt.idle_wo:
            g(f"s_lshl_b32 {R.stmp}, {R.sp}, 2")
            g(f"s_add_u32 {R.stmp}, {R.stmp}, {R.swave}")
            g(f"s_mul_i32 {R.stmp2}, {R.stmp}, {14*1024}")
            for j in range(14):
                g(f"buffer_load_dwordx4 v[{4*(j%16)}:{4*(j%16)+3}], {voff16}, {R.srdWD}, {R.stmp2} offen")
                g(f"s_add_u32 {R.stmp2}, {R.stmp2}, 1024")
        srd(g, R.srdOUT, sout, 2 << 20)
        g.label("L_nopf")
    g("s_waitcnt vmcnt(0)")
    PQ = [PSpec(RING_GQ[h % 6], None, trN, False, None, None) for h in range(34)]
    for n in range(128, 128 + opt.lead):
        a_reads(g, PQ, AF, n)
    g.wait_lgkm0()
    g("s_branch L_Q")
    if opt.ticket:
        g.label("L_overflow")
        g(f"s_mov_b32 {spin}, 0")
        g.label("L_overflow1")
        g(f"s_add_u32 {sdb}, {sdb}, 1")
        g(f"s_and_b32 {sdb}, {sdb}, 7")
        g(f"s_lshl_b32 {R.stmp}, {sdb}, 5")
        g(f"s_mov_b32 {svid}, 1")
        g(f"s_atomic_add {svid}, {ptr2[4:6]}, {R.stmp} glc")
        g(f"s_add_u32 {spin}, {spin}, 1")
        g("s_waitcnt lgkmcnt(0)")
        g(f"s_cmp_lt_u32 {svid}, 32")
        g("s_cbranch_scc1 L_ticket")
        g(f"s_cmp_lt_u32 {spin}, 8")
        g("s_cbranch_scc1 L_overflow1")
        g(f"s_lshr_b32 {svid}, s2, 3")
        g(f"s_and_b32 {sdb}, s2, 7")
        g("s_branch L_ticket")
    g.label("L_signal")
    g(f"v_mov_b32 {vpoll}, 1")
    g("s_mov_b64 exec, 1")
    g(f"buffer_atomic_add {vpoll}, off, {R.srdDBG}, {sdb} offset:4 sc1")
    g("s_mov_b64 exec, -1")
    g("s_branch L_signalled")
    g.label("L_spin_h")
    g(f"s_mov_b32 {spin}, 0")
    g.label("L_spin_h1")
    g(f"buffer_load_dword {vpoll}, off, {R.srdDBG}, {sdb} offset:4 sc1")
    g(f"s_add_u32 {spin}, {spin}, 1")
    g("s_waitcnt vmcnt(0)")
    g(f"v_readfirstlane_b32 {R.stmp}, {vpoll}")
    g("s_nop 0")
    g(f"s_cmp_ge_u32 {R.stmp}, 8")
    g("s_cbranch_scc1 L_h_ok")
    g(f"s_cmp_lt_u32 {spin}, {SPIN}")
    g("s_cbranch_scc1 L_spin_h1")
    g("s_branch L_h_ok")
    g.label("L_spin_s")
    g(f"buffer_load_dword {vpoll}, {tm2[0]}, {R.srdWS}, {spl} offen sc1")
    g.label("L_spin_s0")
    g(f"s_add_u32 {spin}, {spin}, 1")
    g(f"s_sub_u32 {R.stmp2}, {sSL}, 65536")
    g("s_waitcnt vmcnt(0)")
    g(f"v_cmp_eq_u32 vcc, 1, {vpoll}")
    g(f"s_cmp_lt_u32 {spin}, {SPIN}")
    g(f"s_cselect_b32 {snew}, vcc_lo, -1")
    g(f"s_andn2_b32 {snew}, {snew}, {smask}")
    g(f"s_and_b32 {snew}, {snew}, 255")
    g("s_cbranch_scc0 L_spin_s")
    for src in range(8):
        g(f"s_bitcmp1_b32 {snew}, {src}")
        g(f"s_cbranch_scc0 L_nl{src}")
        for u in range(2):
            g(f"buffer_load_dwordx4 {spv[src*8+u*4:src*8+u*4+4]}, {voff16}, {R.srdWS}, {R.stmp2} offen offset:{u*1024} sc1")
        g.label(f"L_nl{src}")
        g(f"s_add_u32 {R.stmp2}, {R.stmp2}, 8192")
    g(f"s_or_b32 {smask}, {smask}, {snew}")
    g(f"s_cmp_lg_u32 {smask}, 255")
    g("s_cbranch_scc1 L_spin_s")
    g("s_waitcnt vmcnt(0)")
    if opt.mfma_sum:
        emit([txt for _, txt in sum_mfmas()])
        g("s_nop 7")
    g("s_branch L_s_ok")
    g.label("L_slow")
    g(f"s_mov_b32 {sslow}, 1")
    g("s_waitcnt vmcnt(0) lgkmcnt(0)")
    g("s_barrier")
    g("s_branch L_restart")
    g.label("L_maxpass")
    g.vm = []
    g.lgkm = []
    emit(q_epi(3))
    for qb in range(4):
        g(f"v_mov_b32 {mx[qb]}, 0xff800000")
    g(f"s_mov_b32 {R.stile}, 0")
    g("s_waitcnt vmcnt(0) lgkmcnt(0)")

    def qk_plain(i):
        for n in range(8):
            for op in at.read_ops(g, R, cfg, 16 * i + 8 + n):
                op()
        g.wait_lgkm0()
        for w in range(32, 64):
            n, txt = at.mfma_desc(R, cfg, i, w)
            for qb in range(4):
                txt = txt.replace(f", {R.negm[qb]}", ", 0")
            g(txt)
        g("s_nop 7")
    g.label("L_max1")
    g("s_barrier")
    kv_piece("K", 3, setup=False).emit_now(g, R)
    g.wait_vm0()
    g("s_barrier")
    for half in range(2):
        qk_plain(5 + half)
        for qb in range(4):
            Sx = R.S[half][qb]
            for j in range(0, 8, 2):
                g(f"v_max3_f32 {mx[qb]}, {mx[qb]}, {Sx[j]}, {Sx[j+1]}")
    g(f"s_add_u32 {R.stile}, {R.stile}, {U}")
    g(f"s_cmp_lt_u32 {R.stile}, {32*U}")
    g("s_cbranch_scc1 L_max1")
    emit(reduce_G_ops(mx, mt, "v_max_f32"))
    qk_plain(-1)
    for n in range(8, 13):
        for op in at.read_ops(g, R, cfg, n):
            op()
    g.wait_lgkm0()
    g("s_branch L_havemax")
    g.label("L_end")
    g("s_endpgm")
    return k


def gen(opt):
    header = open(f"cdna_kernels/{KN}.s.ref").read().split("; Override launch")[0]
    k = gen_kernel(opt)
    body = k.g.lines
    bad = check_hazards(body)
    lp = body[body.index("L_loop:"):]
    lp = lp[:[j for j, l in enumerate(lp) if "s_cbranch_scc1 L_loop" in l][0]]
    bad += check_hazards(lp + lp)
    n1 = sum(1 for l in body if l.startswith("    ") and not l.strip().startswith(";"))
    print("instrs", n1, "hazards", len(bad))
    assert not bad
    asm = header + DOC
    asm += "; @launch grid=(256,1,1) block=(256,1,1) lds=163840\n"
    asm += '.amdgcn_target "amdgcn-amd-amdhsa--gfx950"\n'
    asm += kernel_header(KN + "_kernel") + k.g.text()
    asm += kernel_footer(KN + "_kernel", 512, 102, 256)
    return asm, k.names


def mk(**kw):
    o = Opt()
    for a, v in kw.items():
        assert hasattr(o, a), a
        setattr(o, a, v)
    return o


if __name__ == "__main__":
    import json
    variants = eval(sys.argv[1]) if len(sys.argv) > 1 else {"v5": {}, "v5_st": dict(stamps=True)}
    for name, kw in variants.items():
        o = mk(**kw)
        asm, n1 = gen(o)
        build(asm, f"dev/{name}", KN + "_kernel")
        if o.stamps:
            json.dump([n1], open(f"dev/{name}.json", "w"))
    print(" ".join(variants))
    print(", ".join(f'"dev/{n}.co"' + (f', "dev/{n}.json"' if variants[n].get("stamps") else "") for n in variants))
```
